```python
import torch

def _softmax(x, axis=-1):
    return torch.softmax(x, dim=axis)
def _gelu(x):
    return torch.nn.functional.gelu(x, approximate="tanh")
def _silu(x):
    return torch.nn.functional.silu(x)
def _sigmoid(x):
    return torch.sigmoid(x)
def _layernorm(x, axis=-1, eps=1e-5):
    m = x.mean(dim=axis, keepdim=True)
    v = x.var(dim=axis, keepdim=True, unbiased=False)
    return (x - m) / torch.sqrt(v + eps)
def _scatter_add(tgt, idx, src, axis=0):
    return tgt.clone().index_add_(axis, idx, src)
def _segment_sum(src, seg, n):
    out = torch.zeros((n,) + src.shape[1:], dtype=src.dtype)
    return out.index_add_(0, seg, src)
def _pad(x, pw):
    flat = tuple(v for pair in reversed(pw) for v in pair)
    return torch.nn.functional.pad(x, flat)

kernel_name = 'interleave_layers__ssm_conv_s4__dense_activation_relu__prompt'

def setup_inputs():

    _w = (lambda a: (lambda t: t.to(torch.bfloat16) if t.is_floating_point() else t)(torch.as_tensor(a)))
    def _A_setup():
        B, L, D, N = 1, 2048, 448, 256
        A_re = -(lambda _x: torch.exp(torch.as_tensor(_x)))((lambda *s: torch.randn(*s, dtype=torch.bfloat16) * 1.6)(D, N))
        A_im = torch.pi * (lambda *s: torch.randn(*s, dtype=torch.bfloat16) * 0.2)(D, N)
        B_re = (lambda *s: torch.randn(*s, dtype=torch.bfloat16) * 0.2)(D, N)
        B_im = (lambda *s: torch.randn(*s, dtype=torch.bfloat16) * 0.2)(D, N)
        C_re = (lambda *s: torch.randn(*s, dtype=torch.bfloat16) * 0.2)(D, N)
        C_im = (lambda *s: torch.randn(*s, dtype=torch.bfloat16) * 0.2)(D, N)
        log_dt = (lambda *s: torch.randn(*s, dtype=torch.bfloat16) * 0.2)(D) * 0.5 - 4.0
        Dskip = (lambda *s: torch.randn(*s, dtype=torch.bfloat16) * 0.2)(D)
        return {
            "u": _w((lambda *s: torch.randn(*s, dtype=torch.bfloat16) * 0.05)(B, L, D)),
            "A_re": _w(A_re),
            "A_im": _w(A_im),
            "B_re": _w(B_re),
            "B_im": _w(B_im),
            "C_re": _w(C_re),
            "C_im": _w(C_im),
            "log_dt": _w(log_dt),
            "Dskip": _w(Dskip),
        }
    _A_in = _A_setup()

    def _B_setup():
        B, S, D, Dff = 1, 2048, 448, 1792
        return {
            "x": _w((lambda *s: torch.randn(*s, dtype=torch.bfloat16) * 0.05)(B, S, D)),
            "w1": _w((lambda *s: torch.randn(*s, dtype=torch.bfloat16) * 0.05)(D, Dff)),
            "w2": _w((lambda *s: torch.randn(*s, dtype=torch.bfloat16) * 0.05)(Dff, D)),
        }
    _B_in = _B_setup()

    return {
        "A_u": _A_in["u"],
        "A_A_re": _A_in["A_re"],
        "A_A_im": _A_in["A_im"],
        "A_B_re": _A_in["B_re"],
        "A_B_im": _A_in["B_im"],
        "A_C_re": _A_in["C_re"],
        "A_C_im": _A_in["C_im"],
        "A_log_dt": _A_in["log_dt"],
        "A_Dskip": _A_in["Dskip"],
        "B_x": _B_in["x"],
        "B_w1": _B_in["w1"],
        "B_w2": _B_in["w2"],
    }

def reference(A_u, A_A_re, A_A_im, A_B_re, A_B_im, A_C_re, A_C_im, A_log_dt, A_Dskip, B_x, B_w1, B_w2):
    def _A_ref(u, A_re, A_im, B_re, B_im, C_re, C_im, log_dt, Dskip):
        Bsz, L, D = u.shape
        dt = torch.exp(log_dt)[:, None]
        A = A_re + 1j * A_im
        Bc = B_re + 1j * B_im
        Cc = C_re + 1j * C_im
        logdA = dt * A
        dB = dt * Bc
        l = (lambda x, dt: x.to(dt))(torch.arange(L), A_re.dtype)
        P = torch.exp(logdA[:, :, None] * l[None, None, :])
        K = torch.einsum("dn,dnl,dn->dl", Cc, P, dB).real
        L2 = 2 * L
        Kp = _pad(K, ((0, 0), (0, L)))
        up = (lambda x, *d: x.permute(*d))(u, 0, 2, 1)
        up = _pad(up, ((0, 0), (0, 0), (0, L)))
        Kf = (lambda x, axes=(-2,-1): torch.fft.rfft2(x.float(), dim=axes))(Kp[:, None, :], axes=(-2, -1))
        Uf = (lambda x, axes=(-2,-1): torch.fft.rfft2(x.float(), dim=axes))(up[:, :, None, :], axes=(-2, -1))
        Yf = Uf * Kf[None, :, :, :]
        y = (lambda x, s, axes=(-2,-1): torch.fft.irfft2(x, s=s, dim=axes).to(torch.bfloat16))(Yf, (1, L2), axes=(-2, -1))[:, :, 0, :L]
        y = (lambda x, *d: x.permute(*d))(y, 0, 2, 1) + u * Dskip[None, None, :]
        return y

    def _B_ref(x, w1, w2):
        h = torch.einsum("bsd,df->bsf", x, w1)
        zero = torch.zeros_like(h)
        h = torch.maximum(h, zero)
        return torch.einsum("bsf,fd->bsd", h, w2)

    x = A_u
    x = x + _A_ref(_layernorm(x, axis=-1), A_A_re, A_A_im, A_B_re, A_B_im, A_C_re, A_C_im, A_log_dt, A_Dskip)
    x = x + _B_ref(_layernorm(x, axis=-1), B_w1, B_w2)
    x = x + _A_ref(_layernorm(x, axis=-1), A_A_re, A_A_im, A_B_re, A_B_im, A_C_re, A_C_im, A_log_dt, A_Dskip)
    x = x + _B_ref(_layernorm(x, axis=-1), B_w1, B_w2)
    return x
```

```python
import numpy as np
def bf(u): return (u.astype(np.uint32) << 16).view(np.float32)
def tobf(x):
    x = np.ascontiguousarray(x, dtype=np.float32)
    u = x.view(np.uint32)
    r = ((u + 0x7FFF + ((u >> 16) & 1)) >> 16).astype(np.uint16)
    return r
def rbf(x): return bf(tobf(x))
L, D, F, N = 2048, 448, 1792, 256
YP0 = [0,1,2,3,4,5,6,7,256,258,260,262,264,512,516,520]
YP1 = [768,772,776,1024,1032,1280,1288,1536,1544,1792,1800]
def kgen(d):
    Are, Aim, Bre, Bim, Cre, Cim = [bf(d[k]).astype(np.float64) for k in ['A_A_re','A_A_im','A_B_re','A_B_im','A_C_re','A_C_im']]
    dt = rbf(np.exp(bf(d['A_log_dt']).astype(np.float64)).astype(np.float32)).astype(np.float64)[:, None]
    lam = dt * (Are + 1j * Aim)
    CB = (Cre + 1j * Cim) * (Bre + 1j * Bim) * dt
    a = np.arange(32) * 8
    X = CB[:, None, :] * np.exp(lam[:, None, :] * a[None, :, None])
    yp = np.array(YP0 + YP1)
    Y = np.exp(lam[:, None, :] * yp[None, :, None])
    Xr, Xi, Yr, Yi = [rbf(v).astype(np.float64) for v in (X.real, X.imag, Y.real, Y.imag)]
    T = np.einsum('dyn,dan->dya', Yr, Xr) - np.einsum('dyn,dan->dya', Yi, Xi)
    idx = {p: i for i, p in enumerate(yp)}
    K = np.zeros((D, L))
    for blk in range(8):
        base = 256 * blk
        for aa in range(32):
            if blk == 0: pat = [0,1,2,3,4,5,6,7]
            elif blk == 1: pat = [0,0,2,4,4,4,6,8]
            elif blk < 4: pat = [0,0,0,4,4,4,8,8]
            else: pat = [0,0,0,0,(8 if aa & 1 else 0),8,8,8]
            for i in range(8):
                K[:, base + 8*aa + i] = T[:, idx[base + pat[i]], aa]
    return rbf(K), T
def ln_stats(x):
    m = x.mean(axis=1, dtype=np.float64)
    v = (x.astype(np.float64)**2).mean(axis=1) - m*m
    return m, 1.0/np.sqrt(np.maximum(v, 0) + 1e-5)
def conv(K, u):
    Uf = np.fft.rfft(u.T.astype(np.float64), 2*L, axis=1)
    Kf = np.fft.rfft(K.astype(np.float64), 2*L, axis=1)
    return np.fft.irfft(Uf*Kf, 2*L, axis=1)[:, :L].T
def forward(d, ret=False):
    x0 = bf(d['A_u']).reshape(L, D)
    K, T = kgen(d)
    Dsk = bf(d['A_Dskip']).astype(np.float64)
    w1 = bf(d['B_w1']).astype(np.float64); w2 = bf(d['B_w2']).astype(np.float32)
    w1c = rbf(w1 - w1.mean(axis=0, keepdims=True))
    x = x0; inter = {'K': K, 'T': T, 'w1c': w1c}
    for layer in range(2):
        m, rs = ln_stats(x)
        u = (x - m[:, None]) * rs[:, None]
        y = conv(K, rbf(u))
        x1 = rbf(x + u * Dsk[None, :] + y)
        m1, rs1 = ln_stats(x1)
        h = rbf(np.maximum(x1 @ w1c, 0))
        x2 = rbf(x1 + rs1[:, None] * (h @ w2))
        inter[f'xc{layer}'] = x1; inter[f'h{layer}'] = h; inter[f'xf{layer}'] = x2
        x = x2
    return (x, inter) if ret else x
if __name__ == '__main__':
    d = np.load('ref_seed0.npz')
    out, inter = forward(d, True)
    ref = bf(d['out']).reshape(L, D)
    Kref = d['K']
    print('K err', np.abs(inter['K'] - Kref).max(), 'rms', np.sqrt(((inter['K']-Kref)**2).mean()), 'K rms', np.sqrt((Kref**2).mean()), 'bf16-only rms', np.sqrt(((rbf(Kref)-Kref)**2).mean()))
    e = np.abs(out - ref)
    print('absmax', e.max(), 'rms', np.sqrt((e**2).mean()), 'frac within 1%', (e <= 1e-2*np.abs(ref)).mean())
```

```python
import re

_REG = re.compile(r'^(-|abs\()?\s*([vas])(\d+)\)?$')
_RNG = re.compile(r'^(-)?([vas])\[(\d+):(\d+)\]$')

def regs_of(tok):
    tok = tok.strip()
    if tok in ('vcc', 'vcc_lo', 'vcc_hi'): return {('s', 'vcc')}
    if tok in ('exec', 'exec_lo', 'exec_hi'): return {('s', 'exec')}
    if tok == 'm0': return {('s', 'm0')}
    m = _REG.match(tok)
    if m: return {(m.group(2), int(m.group(3)))}
    m = _RNG.match(tok)
    if m: return {(m.group(2), i) for i in range(int(m.group(3)), int(m.group(4)) + 1)}
    return set()

def split_ops(s):
    out, depth, cur = [], 0, ''
    for ch in s:
        if ch in '[(': depth += 1
        if ch in '])': depth -= 1
        if ch == ',' and depth == 0:
            out.append(cur.strip()); cur = ''
        else:
            cur += ch
    if cur.strip(): out.append(cur.strip())
    return out

TRANS = ('v_exp_f32', 'v_log_f32', 'v_rcp_f32', 'v_rsq_f32', 'v_sqrt_f32', 'v_sin_f32', 'v_cos_f32')

class Ins:
    def __init__(self, text):
        self.text = text
        t = text.split(';')[0].strip()
        self.label = t.endswith(':')
        self.directive = t.startswith('.')
        self.empty = (t == '')
        self.mn = ''
        self.defs = set(); self.uses = set(); self.srcA = set(); self.srcC = set()
        if self.label or self.directive or self.empty: return
        sp = t.split(None, 1)
        mn = sp[0]; self.mn = mn
        rest = sp[1] if len(sp) > 1 else ''
        ops = split_ops(rest)
        mods = ''
        if ops:
            parts = ops[-1].split(None, 1)
            m = re.match(r'^(-?[vas]\[\d+:\d+\]|\S+)(.*)$', ops[-1])
            ops[-1] = m.group(1); mods = m.group(2)
        self.mods = mods; self.ops = ops
        R = [regs_of(o) for o in ops]
        self.mfma = mn.startswith('v_mfma')
        self.valu = mn.startswith('v_') and not self.mfma
        self.salu = mn.startswith('s_')
        self.ds = mn.startswith('ds_')
        self.vmem = mn.startswith(('global_', 'buffer_'))
        self.dpp = '_dpp' in mn or 'quad_perm' in mods or 'row_' in mods or 'wave_' in mods
        self.trans = mn.replace('_e32', '').replace('_e64', '') in TRANS
        self.dot = mn.startswith('v_dot')
        self.perml = mn.startswith('v_permlane')
        self.rdl = mn.startswith(('v_readlane', 'v_readfirstlane'))
        self.ldsdma = self.vmem and ('_lds_' in mn or re.search(r'\blds\b', mods) is not None)
        self.widestore = False
        if self.mfma:
            self.defs = R[0]; self.srcA = R[1] | R[2]; self.srcC = R[3]; self.uses = self.srcA | self.srcC
            self.passes = 8 if '32x32x16' in mn else 4
        elif self.valu:
            if self.perml:
                self.defs = R[0] | R[1]; self.uses = R[0] | R[1]
            elif mn.startswith('v_cmp'):
                self.defs = R[0]; self.uses = set().union(*R[1:])
            elif mn.startswith(('v_add_co', 'v_addc_co', 'v_sub_co')):
                self.defs = R[0] | R[1]; self.uses = set().union(*R[2:])
            else:
                self.defs = R[0]; self.uses = set().union(*R[1:]) if len(R) > 1 else set()
                if mn.startswith(('v_fmac', 'v_dot2c', 'v_pk_fmac', 'v_writelane')) or self.dpp:
                    self.uses |= R[0]
        elif self.ds:
            if mn.startswith(('ds_read', 'ds_bpermute', 'ds_permute', 'ds_swizzle')):
                self.defs = R[0]; self.uses = set().union(*R[1:])
            else:
                self.uses = set().union(*R)
        elif self.vmem:
            if mn.startswith(('buffer_wbl2', 'buffer_inv')):
                pass
            elif self.ldsdma:
                self.uses = set().union(*R) | {('s', 'm0')}
            elif '_load_' in mn:
                self.defs = R[0]; self.uses = set().union(*R[1:])
            else:
                self.uses = set().union(*R)
                if 'sc0' in mods and 'atomic' in mn: self.defs = R[0]
                if mn.endswith(('x3', 'x4')):
                    self.widestore = True
                    self.sdata = R[1] if mn.startswith('global_') else R[0]
        elif self.salu:
            if mn.startswith(('s_cmp', 's_cbranch', 's_branch', 's_waitcnt', 's_nop', 's_barrier', 's_endpgm', 's_sleep', 's_setprio', 's_bitcmp')):
                self.uses = set().union(*R) if R else set()
            else:
                self.defs = R[0] if R else set(); self.uses = set().union(*R[1:]) if len(R) > 1 else set()
                if 'saveexec' in mn: self.defs |= {('s', 'exec')}
    def states(self):
        if self.label or self.directive or self.empty: return 0
        if self.mn == 's_nop': return int(self.ops[0], 0) + 1
        return 1

def need(p, c):
    n = 0
    vec = lambda S: {r for r in S if r[0] in 'va'}
    sca = lambda S: {r for r in S if r[0] == 's'}
    if p.valu:
        ov = vec(p.defs) & c.uses
        if ov:
            if c.mfma: n = max(n, 2)
            if c.valu and c.dpp: n = max(n, 2)
            if c.perml: n = max(n, 2)
            if c.rdl: n = max(n, 1)
            if p.trans: n = max(n, 1)
        if p.dot:
            if c.mn == p.mn:
                if vec(p.defs) & (c.uses - c.defs): n = max(n, 3)
            elif vec(p.defs) & (c.uses | c.defs): n = max(n, 3)
        os_ = sca(p.defs) & c.uses
        if os_:
            if c.valu or c.mfma: n = max(n, 4 if c.mn.startswith(('v_readlane', 'v_writelane')) else 2)
            if c.vmem: n = max(n, 5)
        if ('s', 'vcc') in p.defs and c.valu and c.mn.startswith('v_cndmask'): n = max(n, 2)
    if p.mfma:
        big = p.passes == 8
        if c.mfma:
            if p.defs & c.srcA: n = max(n, 12 if big else 8)
            if p.defs & c.srcC and not (p.defs == c.srcC and p.passes == c.passes): n = max(n, 10 if big else 6)
            if p.defs & c.defs and not (p.defs == c.srcC): n = max(n, 10 if big else 6)
        else:
            if p.defs & (c.uses | c.defs): n = max(n, 12 if big else 8)
            if c.valu and p.srcC & c.defs: n = max(n, 7 if big else 3)
    if p.salu and ('s', 'm0') in p.defs and c.ldsdma: n = max(n, 1)
    if p.widestore and (p.sdata & c.defs): n = max(n, 2 if c.valu else 1)
    return n

def insert_nops(lines):
    out = []; hist = []
    added = 0
    for text in lines:
        ins = Ins(text)
        if ins.states() == 0:
            out.append(text); continue
        req = 0; dist = 0
        for p in reversed(hist):
            if dist >= 13: break
            k = need(p, ins) - dist
            if k > req: req = k
            dist += p.states()
        if req > 0:
            nop = Ins(f'    s_nop {req-1}')
            out.append(nop.text + '   ; auto'); hist.append(nop); added += req
        out.append(text); hist.append(ins)
        if len(hist) > 40: hist = hist[-20:]
    return out, added

class Asm:
    def __init__(self):
        self.lines = []
        self.vm = 0
        self.vm_done = 0
        self.lg = 0; self.lg_done = 0
    def __call__(self, text):
        for ln in text.split('\n'):
            ln = ln.strip()
            if not ln: continue
            self.lines.append(ln if ln.endswith(':') else '    ' + ln)
    def vmem(self, text):
        self(text); self.vm += 1
        assert self.vm - self.vm_done <= 63, 'too many vm ops in flight'
        return self.vm
    def lds(self, text):
        if self.lg - self.lg_done >= 15:
            self.wait(lg=self.lg - 13)
        self(text); self.lg += 1
        return self.lg
    def wait(self, vm=None, lg=None):
        parts = []
        if vm is not None and vm > self.vm_done:
            parts.append(f'vmcnt({self.vm - vm})'); self.vm_done = vm
        if lg is not None and lg > self.lg_done:
            parts.append(f'lgkmcnt({self.lg - lg})'); self.lg_done = lg
        if parts: self('s_waitcnt ' + ' '.join(parts))
    def wait_all(self, vm=True, lg=True, force=False):
        parts = []
        if vm and (force or self.vm > self.vm_done): parts.append('vmcnt(0)'); self.vm_done = self.vm
        if lg and (force or self.lg > self.lg_done): parts.append('lgkmcnt(0)'); self.lg_done = self.lg
        if parts: self('s_waitcnt ' + ' '.join(parts))
    def text(self):
        out, added = insert_nops(self.lines)
        self.nops_added = added
        return '\n'.join(out) + '\n'

def vr(a, n=1, k='v'):
    return f'{k}{a}' if n == 1 else f'{k}[{a}:{a+n-1}]'
def ar(a, n=1): return vr(a, n, 'a')
def sr(a, n=1): return vr(a, n, 's')
```

```python
import sys, struct
sys.path.insert(0, 'work')
from gasm import *

KNAME = 'interleave_layers__ssm_conv_s4__dense_activation_relu__prompt_kernel'
def f2u(x): return struct.unpack('<I', struct.pack('<f', x))[0]
def fx(x): return hex(f2u(x))

WS_EPOCH = 0x0
WS_FLG0 = 0x1000
WS_CNT = 0x4000
NSYNC = 3
WS_HFLG = 0x20000
WS_ST0 = 0x30000
WS_ST2 = 0x34000
WS_TS = 0x40000
WS_XT0 = 0x100000
WS_X1 = 0x300000
WS_X2 = 0x500000
WS_X3 = 0x700000
WS_H0 = 0x1000000
WS_H1 = 0x1800000
WS_DUMP = 0x2000000
WS_SIZE = 0x10000000

SLOT = 28672
L_KC = 114688
KCS = 4160
L_UI = 147968
UIS = 4608
L_MISC = 157184
LDS_BYTES = 163840
IMG = 60 * 528
L_TB = 126720
PH = 2112
PWS = 4 * PH

S_X0, S_ARE, S_AIM, S_BRE, S_BIM, S_CRE, S_CIM, S_LDT = 4, 6, 8, 10, 12, 14, 16, 18
S_DSK, S_W1, S_W2, S_OUT, S_DBG, S_WS = 20, 24, 26, 28, 30, 32
S_W, S_G, S_J, S_P, S_TAG, S_LAYER, S_SUB, S_NB, S_PI, S_CB = 34, 35, 36, 37, 38, 39, 40, 41, 42, 43
S_DK = 44
S_LOCAL, S_SPIN = 46, 47
S_T0, S_T1, S_T2, S_T3 = 48, 49, 50, 51
R_W1, R_W2, R_WS = 52, 56, 60
S_XIN, S_STIN, S_XOUT, S_HB, S_HF, S_CNT = 64, 65, 66, 67, 68, 69
S_K1 = 70
S_K2 = 72
S_T4, S_T5, S_T6, S_T7 = 74, 75, 76, 77
S_TE, S_TL = 78, 79
S_TS = 80
S_TSP = 100

V_TID, V_LANE, V_TR, V_L16, V_CA, V_CB, V_PW, V_PR, V_XIN, V_XOUT, V_ST, V_UW = range(12)
V_T0, V_T1, V_T2, V_T3 = 12, 13, 14, 15
V_W1 = 144

SPIN_MAX = 1 << 18

class Gen:
    def __init__(self, diag=False, stop=None):
        self.a = Asm(); self.diag = diag; self.stop = stop; self.nlab = 0; self.nts = 0
    def lab(self, p='L'):
        self.nlab += 1; return f'{p}{self.nlab}'
    def ts(self, idx, per_layer=False):
        if not self.diag: return
        a = self.a
        a.wait_all(vm=False, lg=True)
        a(f's_memrealtime s[{S_TSP}:{S_TSP+1}]\ns_waitcnt lgkmcnt(0)')
        if per_layer:
            l = self.lab()
            a(f's_cmp_eq_u32 s{S_LAYER}, 0\ns_cselect_b32 s{S_TS+idx}, s{S_TSP}, s{S_TS+idx}\ns_cselect_b32 s{S_TS+idx+8}, s{S_TS+idx+8}, s{S_TSP}')
        else:
            a(f's_mov_b32 s{S_TS+idx}, s{S_TSP}')

    def spin_tail(self, loop, done):
        a = self.a
        a(f'''s_cbranch_vccz {done}
        s_add_u32 s{S_SPIN}, s{S_SPIN}, 1
        s_cmp_lt_u32 s{S_SPIN}, {SPIN_MAX}
        s_cbranch_scc1 {loop}
        {done}:''')

    def gsignal(self):
        a = self.a
        a.wait_all(force=True)
        a('s_barrier')
        sk = self.lab()
        a(f'''s_cmp_lg_u32 s{S_W}, 0
        s_cbranch_scc1 {sk}
        s_lshl_b32 s{S_T0}, s{S_G}, 8
        s_add_u32 s{S_T0}, s{S_T0}, s{S_CNT}
        v_lshlrev_b32 v{V_T0}, 11, v{V_LANE}
        v_mov_b32 v{V_T1}, 1
        s_mov_b64 exec, 0xff
        buffer_atomic_add v{V_T1}, v{V_T0}, s[{R_WS}:{R_WS+3}], s{S_T0} offen
        s_mov_b64 exec, -1
        {sk}:''')
    def gwait(self):
        a = self.a
        sk = self.lab(); lp = self.lab(); dn = self.lab()
        a(f'''s_cmp_lg_u32 s{S_W}, 0
        s_cbranch_scc1 {sk}
        s_lshl_b32 s{S_T0}, s{S_G}, 11
        s_add_u32 s{S_T0}, s{S_T0}, s{S_CNT}
        v_and_b32 v{V_T0}, 7, v{V_LANE}
        v_lshlrev_b32 v{V_T0}, 8, v{V_T0}
        {lp}:
        buffer_load_dword v{V_T1}, v{V_T0}, s[{R_WS}:{R_WS+3}], s{S_T0} offen sc1
        s_waitcnt vmcnt(0)
        v_cmp_ne_u32 vcc, 28, v{V_T1}''')
        self.spin_tail(lp, dn)
        a(f'''{sk}:
        s_add_u32 s{S_CNT}, s{S_CNT}, 0x4000
        s_barrier''')
        a.wait_all(force=False)

    def entry(self):
        a = self.a
        a(f'''s_cmp_ge_u32 s2, 256
        s_cbranch_scc1 L_end
        s_load_dwordx16 s[4:19], s[0:1], 0
        s_load_dwordx8 s[20:27], s[0:1], 64
        s_load_dwordx4 s[28:31], s[0:1], 96
        s_load_dwordx2 s[32:33], s[0:1], 112''')
        if self.diag:
            a(f's_memrealtime s[{S_TSP}:{S_TSP+1}]')
        a(f'''s_getpc_b64 s[{S_T0}:{S_T1}]
        L_pcbase:
        s_lshr_b32 s{S_T2}, s2, 3
        s_min_u32 s{S_T2}, s{S_T2}, (L_end-L_pcbase)/4096-1
        s_lshl_b32 s{S_T2}, s{S_T2}, 12
        v_lshlrev_b32 v{V_T0}, 4, v0
        v_add_u32 v{V_T0}, s{S_T2}, v{V_T0}''')
        a.vmem(f'global_load_dwordx4 v[140:143], v{V_T0}, s[{S_T0}:{S_T1}]')
        a(f'''v_and_b32 v{V_LANE}, 63, v0
        v_lshrrev_b32 v{V_T1}, 6, v0
        v_lshlrev_b32 v{V_L16}, 4, v{V_LANE}
        v_readfirstlane_b32 s{S_W}, v{V_T1}
        s_and_b32 s{S_G}, s2, 7
        s_lshr_b32 s{S_J}, s2, 3
        s_sub_u32 s{S_J}, s{S_J}, 4
        s_max_i32 s{S_J}, s{S_J}, 0
        s_mul_i32 s{S_P}, s{S_G}, 28
        s_add_u32 s{S_P}, s{S_P}, s{S_J}
        s_mov_b32 s{S_SPIN}, 0
        s_mov_b32 s{S_LAYER}, 0''')
        a(f'''s_lshl_b32 s{S_T2}, s2, 2
        s_add_u32 s{S_T2}, s{S_T2}, s{S_W}
        s_mul_i32 s{S_T2}, s{S_T2}, 1792
        v_lshrrev_b32 v16, 5, v{V_LANE}
        v_and_b32 v17, 31, v{V_LANE}
        v_mul_u32_u24 v18, 896, v16
        v_lshl_add_u32 v18, v17, 4, v18
        v_add_u32 v18, s{S_T2}, v18''')
        for r in range(20, 28): a(f'v_mov_b32 v{r}, 0')
        a(f'''s_lshl_b32 s{S_T3}, s{S_P}, 2
        s_add_u32 s{S_T3}, s{S_T3}, s{S_W}
        s_lshl_b32 s{S_T3}, s{S_T3}, 8
        v_lshl_add_u32 v19, v{V_LANE}, 2, s{S_T3}
        v_mov_b32 v{V_T2}, 0
        s_lshl_b32 s{S_T4}, s{S_P}, 2
        s_waitcnt lgkmcnt(0)''')
        if self.diag: a(f's_mov_b32 s{S_TS}, s{S_TSP}')
        a(f'''s_mov_b32 exec_lo, 0x0fffffff
        s_mov_b32 exec_hi, 0x0fffffff''')
        a.vmem(f'global_load_dwordx4 v[20:23], v18, s[{S_X0}:{S_X0+1}]')
        t_rows = a.vmem(f'global_load_dwordx4 v[24:27], v18, s[{S_X0}:{S_X0+1}] offset:448')
        a('s_mov_b64 exec, -1')
        t_ep = a.vmem(f'global_load_dword v28, v{V_T2}, s[{S_WS}:{S_WS+1}] sc1')
        for i, s in enumerate((S_ARE, S_AIM, S_BRE, S_BIM, S_CRE, S_CIM)):
            self.t_par = a.vmem(f'global_load_dword v{30+i}, v19, s[{s}:{s+1}]')
        a(f'''s_load_dword s{S_T5}, s[{S_LDT}:{S_LDT+1}], s{S_T4}
        s_load_dword s{S_T6}, s[{S_DSK}:{S_DSK+1}], s{S_T4}''')
        a(f'''s_mov_b32 s{R_WS}, s{S_WS}
        s_and_b32 s{R_WS+1}, s{S_WS+1}, 0xffff
        s_mov_b32 s{R_WS+2}, {WS_SIZE}
        s_mov_b32 s{R_WS+3}, 0x20000
        s_mov_b32 s{R_W1}, s{S_W1}
        s_and_b32 s{R_W1+1}, s{S_W1+1}, 0xffff
        s_mov_b32 s{R_W1+2}, {448*1792*2}
        s_mov_b32 s{R_W1+3}, 0x20000
        s_mov_b32 s{R_W2}, s{S_W2}
        s_and_b32 s{R_W2+1}, s{S_W2+1}, 0xffff
        s_mov_b32 s{R_W2+2}, {448*1792*2}
        s_mov_b32 s{R_W2+3}, 0x20000''')
        sk = self.lab()
        a(f'''v_mov_b32 v36, 0
        v_mov_b32 v37, 0
        v_mov_b32 v38, 0
        v_mov_b32 v39, 0
        s_lshl_b32 s{S_T0}, s2, 6
        s_add_u32 s{S_T0}, s{S_T0}, {WS_ST2}
        s_min_u32 s{S_T1}, s2, {NSYNC*64-1}
        s_lshl_b32 s{S_T1}, s{S_T1}, 8
        s_add_u32 s{S_T1}, s{S_T1}, {WS_CNT}
        s_lshl_b32 s{S_T2}, s{S_W}, 4
        s_add_u32 s{S_T0}, s{S_T0}, s{S_T2}
        s_add_u32 s{S_T1}, s{S_T1}, s{S_T2}
        s_mov_b64 exec, 1''')
        a.vmem(f'buffer_store_dwordx4 v[36:39], v{V_T2}, s[{R_WS}:{R_WS+3}], s{S_T0} offen sc1')
        a.vmem(f'buffer_store_dwordx4 v[36:39], v{V_T2}, s[{R_WS}:{R_WS+3}], s{S_T1} offen sc1')
        a('s_mov_b64 exec, -1')
        a(f'''s_cmp_ge_u32 s{S_J}, 14
        s_cselect_b32 s{S_T0}, 1, 0
        s_cselect_b32 s{S_T1}, 14, 0
        s_lshl_b32 s{S_SUB}, s{S_G}, 1
        s_add_u32 s{S_SUB}, s{S_SUB}, s{S_T0}
        s_sub_u32 s{S_NB}, s{S_J}, s{S_T1}
        s_cmp_ge_u32 s{S_NB}, 7
        s_cselect_b32 s{S_PI}, 1, 0
        s_cselect_b32 s{S_T1}, 7, 0
        s_sub_u32 s{S_CB}, s{S_NB}, s{S_T1}
        s_lshl_b32 s{S_TE}, s{S_SUB}, 1
        s_add_u32 s{S_TE}, s{S_TE}, s{S_PI}
        s_add_u32 s{S_TL}, s{S_TE}, 32
        s_mov_b32 s{S_XIN}, {WS_XT0}
        s_mov_b32 s{S_STIN}, {WS_ST0}
        s_mov_b32 s{S_XOUT}, {WS_X1}
        s_mov_b32 s{S_HB}, {WS_H0}
        s_lshl_b32 s{S_HF}, s{S_SUB}, 9
        s_add_u32 s{S_HF}, s{S_HF}, {WS_HFLG}
        s_mov_b32 s{S_CNT}, {WS_CNT}
        s_mov_b32 s{S_K1}, {fx(1/448)}
        s_mov_b32 s{S_K1+1}, {fx(1/448)}
        s_mov_b32 s{S_K2}, 0
        s_mov_b32 s{S_K2+1}, {fx(1e-5)}''')
        a(f'''v_lshrrev_b32 v40, 5, v{V_LANE}
        v_lshlrev_b32 v{V_TR}, 8, v40
        v_bfe_u32 v41, v{V_LANE}, 2, 2
        v_lshl_or_b32 v{V_TR}, v41, 6, v{V_TR}
        v_bfe_u32 v42, v{V_LANE}, 4, 1
        v_lshl_or_b32 v{V_TR}, v42, 5, v{V_TR}
        v_and_b32 v43, 3, v{V_LANE}
        v_lshl_or_b32 v{V_TR}, v43, 3, v{V_TR}''')
        a(f'''s_lshr_b32 s{S_T0}, s{S_W}, 1
        s_and_b32 s{S_T1}, s{S_W}, 1
        s_lshl_b32 s{S_T1}, s{S_T1}, 8
        s_mul_i32 s{S_T2}, s{S_T0}, {4*KCS}
        s_add_u32 s{S_T2}, s{S_T2}, {L_KC+328+3*KCS}
        s_sub_u32 s{S_T2}, s{S_T2}, s{S_T1}
        v_lshrrev_b32 v44, 4, v{V_LANE}
        v_lshlrev_b32 v45, 4, v44
        v_mul_u32_u24 v46, {KCS}, v43
        v_lshl_add_u32 v46, v41, 3, v46
        v_add_u32 v46, v45, v46
        v_sub_u32 v{V_CA}, s{S_T2}, v46
        s_mul_i32 s{S_T2}, s{S_T0}, {UIS}
        s_add_u32 s{S_T2}, s{S_T2}, {L_UI+528-192}
        s_sub_u32 s{S_T2}, s{S_T2}, s{S_T1}
        v_and_b32 v47, 15, v{V_LANE}
        v_lshl_add_u32 v{V_CB}, v47, 5, s{S_T2}
        v_sub_u32 v{V_CB}, v{V_CB}, v45
        s_mul_i32 s{S_T2}, s{S_W}, {PWS}
        v_mul_u32_u24 v{V_PW}, {PH}, v44
        v_lshl_add_u32 v{V_PW}, v47, 4, v{V_PW}
        v_add_u32 v{V_PW}, s{S_T2}, v{V_PW}
        v_and_b32 v46, 1, v0
        v_mul_u32_u24 v{V_PR}, {2*PH}, v46
        v_lshrrev_b32 v46, 1, v0
        v_lshl_add_u32 v{V_PR}, v46, 4, v{V_PR}
        s_lshl_b32 s{S_T2}, s{S_P}, 5
        v_mul_u32_u24 v{V_XIN}, 7168, v0
        v_add_u32 v{V_XIN}, s{S_T2}, v{V_XIN}
        s_lshl_b32 s{S_T2}, s{S_P}, 7
        v_lshrrev_b32 v46, 2, v0
        v_mul_u32_u24 v{V_XOUT}, {SLOT}, v46
        v_lshl_add_u32 v{V_XOUT}, v43, 4, v{V_XOUT}
        v_add_u32 v{V_XOUT}, s{S_T2}, v{V_XOUT}
        v_lshlrev_b32 v{V_ST}, 6, v0
        v_lshl_add_u32 v{V_UW}, v0, 4, 0
        v_add_u32 v{V_UW}, {L_UI+512}, v{V_UW}''')
        a(f'''v_mul_u32_u24 v46, {UIS}, v40
        v_lshl_add_u32 v46, v17, 4, v46
        v_add_u32 v46, {L_UI}, v46''')
        a('s_waitcnt lgkmcnt(0)')
        a.lds(f'ds_write_b128 v46, v[36:39]')
        a(f'''s_lshl_b32 s{S_DK}, s{S_T6}, 16
        s_and_b32 s{S_DK+1}, s{S_T6}, 0xffff0000''')
        a(f'''s_mul_i32 s{S_T0}, s{S_W}, 1920
        s_add_u32 s{S_T0}, s{S_T0}, {L_TB}
        v_mul_u32_u24 v46, 960, v16
        v_lshl_add_u32 v46, v17, 4, v46
        v_add_u32 v46, s{S_T0}, v46
        s_lshl_b32 s{S_T0}, s{S_W}, 7
        s_add_u32 s{S_T0}, s{S_T0}, {L_TB}
        v_mul_u32_u24 v47, 960, v41
        v_lshl_add_u32 v47, v44, 5, v47
        v_lshl_add_u32 v47, v43, 3, v47
        v_add_u32 v47, s{S_T0}, v47
        v_mov_b32 v48, 0
        v_mov_b32 v49, 0
        s_mov_b32 s{S_T7}, 0x3f803f80''')
        a.wait(vm=t_rows)
        a(f'''s_mov_b32 exec_lo, 0x0fffffff
        s_mov_b32 exec_hi, 0x0fffffff''')
        a.lds('ds_write_b128 v46, v[20:23]')
        a.lds('ds_write_b128 v46, v[24:27] offset:448')
        a('s_mov_b64 exec, -1')
        for r in range(20, 28):
            a(f'v_dot2c_f32_bf16 v48, s{S_T7}, v{r}\nv_dot2c_f32_bf16 v49, v{r}, v{r}')
        a.wait_all(vm=False)
        a('s_barrier')
        a.lds('ds_read_b64_tr_b16 v[20:21], v47')
        a.lds('ds_read_b64_tr_b16 v[22:23], v47 offset:3840')
        a.lds('ds_read_b64_tr_b16 v[24:25], v47 offset:512')
        a.lds('ds_read_b64_tr_b16 v[26:27], v47 offset:4352')
        for m in ('quad_perm:[1,0,3,2]', 'quad_perm:[2,3,0,1]', 'row_half_mirror', 'row_mirror'):
            a(f'v_add_f32_dpp v48, v48, v48 {m} row_mask:0xf bank_mask:0xf\nv_add_f32_dpp v49, v49, v49 {m} row_mask:0xf bank_mask:0xf')
        a('''v_add_f32_dpp v48, v48, v48 row_bcast:15 row_mask:0xa bank_mask:0xf
        v_add_f32_dpp v49, v49, v49 row_bcast:15 row_mask:0xa bank_mask:0xf''')
        a(f'''s_lshl_b32 s{S_T0}, s2, 2
        s_add_u32 s{S_T0}, s{S_T0}, s{S_W}
        s_lshl_b32 s{S_T0}, s{S_T0}, 4
        s_add_u32 s{S_T0}, s{S_T0}, {WS_ST0}
        v_lshlrev_b32 v46, 3, v16
        s_mov_b32 exec_lo, 0x10000
        s_mov_b32 exec_hi, 0x10000''')
        a.vmem(f'buffer_store_dwordx2 v[48:49], v46, s[{R_WS}:{R_WS+3}], s{S_T0} offen sc1')
        a(f'''s_mov_b64 exec, -1
        s_mul_i32 s{S_T0}, s2, 7168
        s_lshl_b32 s{S_T1}, s{S_W}, 10
        s_add_u32 s{S_T0}, s{S_T0}, s{S_T1}
        s_add_u32 s{S_T0}, s{S_T0}, {WS_XT0}
        s_add_u32 s{S_T1}, s{S_T0}, 4096''')
        a.wait_all(vm=False)
        a.vmem(f'buffer_store_dwordx4 v[20:23], v{V_L16}, s[{R_WS}:{R_WS+3}], s{S_T0} offen sc1')
        sk = self.lab()
        a(f's_cmp_eq_u32 s{S_W}, 3\ns_cbranch_scc1 {sk}')
        a(f'buffer_store_dwordx4 v[24:27], v{V_L16}, s[{R_WS}:{R_WS+3}], s{S_T1} offen sc1')
        a(f'{sk}:')
        a('s_waitcnt vmcnt(4)')
        a.vm_done = self.t_par
        a(f'''v_readfirstlane_b32 s{S_TAG}, v28
        s_add_u32 s{S_TAG}, s{S_TAG}, 16
        s_and_b32 s{S_TAG}, s{S_TAG}, 0xfffffff0''')

    def flag0(self):
        a = self.a
        a('s_waitcnt vmcnt(0)'); a.vm_done = a.vm
        a('s_barrier')
        sk = self.lab()
        a(f'''s_cmp_lg_u32 s{S_W}, 0
        s_cbranch_scc1 {sk}
        s_getreg_b32 s{S_T0}, hwreg(HW_REG_XCC_ID, 0, 4)
        s_or_b32 s{S_T0}, s{S_T0}, s{S_TAG}
        s_lshl_b32 s{S_T1}, s2, 2
        s_add_u32 s{S_T1}, s{S_T1}, {WS_FLG0}
        v_mov_b32 v{V_T0}, s{S_T0}
        v_mov_b32 v{V_T1}, 0
        s_mov_b64 exec, 1
        buffer_store_dword v{V_T0}, v{V_T1}, s[{R_WS}:{R_WS+3}], s{S_T1} offen sc1
        s_mov_b64 exec, -1
        {sk}:''')

    def wait_flag0(self):
        a = self.a
        lp = self.lab(); dn = self.lab()
        a(f'''s_and_b32 s{S_T1}, s{S_SUB}, 1
        s_mul_i32 s{S_T1}, s{S_T1}, 112
        s_add_u32 s{S_T1}, s{S_T1}, s{S_G}
        s_lshl_b32 s{S_T1}, s{S_T1}, 2
        s_add_u32 s{S_T1}, s{S_T1}, {WS_FLG0+128}
        v_min_u32 v{V_T0}, 13, v{V_LANE}
        v_lshlrev_b32 v{V_T0}, 5, v{V_T0}
        s_mov_b32 s{S_T0}, {WS_FLG0}
        {lp}:
        buffer_load_dwordx4 v[16:19], v{V_L16}, s[{R_WS}:{R_WS+3}], s{S_T0} offen sc1
        buffer_load_dword v21, v{V_T0}, s[{R_WS}:{R_WS+3}], s{S_T1} offen sc1
        s_waitcnt vmcnt(0)
        v_xor_b32 v16, s{S_TAG}, v16
        v_xor_b32 v17, s{S_TAG}, v17
        v_xor_b32 v18, s{S_TAG}, v18
        v_xor_b32 v19, s{S_TAG}, v19
        v_xor_b32 v20, s{S_TAG}, v21
        v_or3_b32 v16, v16, v17, v18
        v_or3_b32 v16, v16, v19, v20
        v_cmp_lt_u32 vcc, 15, v16''')
        self.spin_tail(lp, dn)
        a.vm_done = a.vm
        a(f'''v_readfirstlane_b32 s{S_T0}, v21
        v_cmp_ne_u32 vcc, s{S_T0}, v21
        s_cmp_eq_u64 vcc, 0
        s_cselect_b32 s{S_LOCAL}, 1, 0''')
        sk = self.lab()
        a(f'''s_lshl_b32 s{S_T0}, s2, 2
        s_add_u32 s{S_T0}, s{S_T0}, s{S_W}
        s_cmp_lg_u32 s{S_T0}, 128
        s_cbranch_scc1 {sk}
        v_mov_b32 v{V_T0}, s{S_TAG}
        v_mov_b32 v{V_T1}, 0
        s_mov_b64 exec, 1
        buffer_store_dword v{V_T0}, v{V_T1}, s[{R_WS}:{R_WS+3}], 0 offen sc1
        s_mov_b64 exec, -1
        s_waitcnt vmcnt(0)
        {sk}:''')

    def kgen(self):
        a = self.a
        P = lambda r: f'v[{r}:{r+1}]'
        LOG2E = 1.4426950408889634
        l_hi = struct.unpack('<f', struct.pack('<f', LOG2E))[0]
        l_lo = LOG2E - l_hi
        a(f'''s_lshl_b32 s{S_T0}, s{S_T5}, 16
        s_and_b32 s{S_T1}, s{S_T5}, 0xffff0000
        s_cmp_ge_u32 s{S_W}, 2
        s_cselect_b32 s{S_T0}, s{S_T1}, s{S_T0}
        v_mov_b32 v40, s{S_T0}
        v_mov_b32 v41, {fx(l_hi)}
        v_mul_f32 v42, v40, v41
        v_fma_f32 v43, v40, v41, -v42
        v_fmamk_f32 v43, v40, {fx(l_lo)}, v43
        v_exp_f32 v42, v42
        v_mul_f32 v43, {fx(0.6931471805599453)}, v43
        v_fma_f32 v42, v42, v43, v42
        v_cvt_pk_bf16_f32 v42, v42, v42
        v_lshlrev_b32 v42, 16, v42
        v_mov_b32 v43, v42''')
        DT = 42
        names = ['are', 'aim', 'bre', 'bim', 'cre', 'cim']
        R = {n: 44 + 2*i for i, n in enumerate(names)}
        for i, n in enumerate(names):
            a(f'v_lshlrev_b32 v{R[n]}, 16, v{30+i}\nv_and_b32 v{R[n]+1}, 0xffff0000, v{30+i}')
        SIG, TH = R['are'], R['aim']
        a(f'''v_pk_mul_f32 {P(SIG)}, {P(SIG)}, {P(DT)}
        v_pk_mul_f32 {P(TH)}, {P(TH)}, {P(DT)}
        v_mul_f32 v{SIG}, v41, v{SIG}
        v_mul_f32 v{SIG+1}, v41, v{SIG+1}
        v_mul_f32 v{TH}, 0.15915494, v{TH}
        v_mul_f32 v{TH+1}, 0.15915494, v{TH+1}''')
        TA, TB = 56, 58
        def cmul(o, x, y):
            a(f'''v_pk_mul_f32 {P(TA)}, {P(x+2)}, {P(y+2)}
            v_pk_mul_f32 {P(TB)}, {P(x+2)}, {P(y)}
            v_pk_fma_f32 {P(o+2)}, {P(x)}, {P(y+2)}, {P(TB)}
            v_pk_fma_f32 {P(o)}, {P(x)}, {P(y)}, {P(TA)} neg_lo:[0,0,1] neg_hi:[0,0,1]''')
        def direct(o, p):
            if p == 1:
                e, f = SIG, TH
            else:
                e, f = TA, TB
                for k in range(2):
                    a(f'v_mul_f32 v{TA+k}, {fx(float(p))}, v{SIG+k}\nv_mul_f32 v{TB+k}, {fx(float(p))}, v{TH+k}')
            a(f'''v_fract_f32 v{TB}, v{f}
            v_fract_f32 v{TB+1}, v{f+1}
            v_exp_f32 v{TA}, v{e}
            v_exp_f32 v{TA+1}, v{e+1}
            v_cos_f32 v{o}, v{TB}
            v_cos_f32 v{o+1}, v{TB+1}
            v_sin_f32 v{o+2}, v{TB}
            v_sin_f32 v{o+3}, v{TB+1}
            v_pk_mul_f32 {P(o)}, {P(o)}, {P(TA)}
            v_pk_mul_f32 {P(o+2)}, {P(o+2)}, {P(TA)}''')
        VW, VF = 16, 17
        a(f'''s_mul_i32 s{S_T0}, s{S_W}, {IMG}
        v_lshl_add_u32 v{VW}, v{V_LANE}, 3, s{S_T0}
        v_and_b32 v18, 31, v{V_LANE}
        v_lshrrev_b32 v19, 5, v{V_LANE}
        v_mul_u32_u24 v{VF}, 528, v18
        v_lshl_add_u32 v{VF}, v19, 4, v{VF}
        v_add_u32 v{VF}, s{S_T0}, v{VF}''')
        wr = [0]
        def emit(row, z, neg):
            t = 20 + 2 * (wr[0] % 4); wr[0] += 1
            s = '-' if neg else ''
            a(f'v_cvt_pk_bf16_f32 v{t}, v{z}, v{z+1}\nv_cvt_pk_bf16_f32 v{t+1}, {s}v{z+2}, {s}v{z+3}')
            a.lds(f'ds_write_b64 v{VW}, {P(t)} offset:{row*528}')
        from emu import YP0, YP1
        yrow = {}
        for rho, p in enumerate(YP0): yrow[p] = 8 * (rho >> 2) + (rho & 3)
        for rho, p in enumerate(YP1): yrow[p] = 8 * (rho >> 2) + 4 + (rho & 3)
        Z1, Z2, Z4, Z6, Z8, WW, WK, ZT, X = 60, 64, 68, 72, 76, 80, 84, 88, 92
        a(f'v_mov_b32 v20, 0x3f803f80\nv_mov_b32 v21, 0'); wr[0] = 1
        a.lds(f'ds_write_b64 v{VW}, v[20:21] offset:{yrow[0]*528}')
        direct(Z1, 1); emit(yrow[1], Z1, True)
        direct(Z8, 8); direct(WW, 256)
        cmul(Z2, Z1, Z1); emit(yrow[2], Z2, True)
        cmul(ZT, Z2, Z1); emit(yrow[3], ZT, True)
        cmul(Z4, Z2, Z2); emit(yrow[4], Z4, True)
        cmul(ZT, Z4, Z1); emit(yrow[5], ZT, True)
        cmul(Z6, Z4, Z2); emit(yrow[6], Z6, True)
        cmul(ZT, Z6, Z1); emit(yrow[7], ZT, True)
        emit(yrow[256], WW, True)
        for o, z in ((2, Z2), (4, Z4), (6, Z6), (8, Z8)):
            cmul(ZT, WW, z); emit(yrow[256+o], ZT, True)
        for k in range(2, 8):
            cmul(WK, WW if k == 2 else WK, WW); emit(yrow[256*k], WK, True)
            if k < 4:
                cmul(ZT, WK, Z4); emit(yrow[256*k+4], ZT, True)
            cmul(ZT, WK, Z8); emit(yrow[256*k+8], ZT, True)
        self.flag0()
        cmul(X, R['cre'], R['bre'])
        a(f'v_pk_mul_f32 {P(X)}, {P(X)}, {P(DT)}\nv_pk_mul_f32 {P(X+2)}, {P(X+2)}, {P(DT)}')
        YF = 144; XF = 208
        for i in range(32):
            emit(28 + i, X, False)
            if 4 <= i < 20:
                s = i - 4
                a.lds(f'ds_read_b128 v[{YF+4*s}:{YF+4*s+3}], v{VF} offset:{32*s}')
            if i < 31: cmul(X, X, Z8)
        tk = {}
        NXB = 12
        def xread(s):
            r = XF + 4 * (s % NXB)
            tk[s] = a.lds(f'ds_read_b128 v[{r}:{r+3}], v{VF} offset:{28*528+32*s}')
        for s in range(NXB): xread(s)
        D = 24
        for s in range(16):
            a.wait(lg=tk[s])
            r = XF + 4 * (s % NXB)
            a(f'v_mfma_f32_32x32x16_bf16 v[{D}:{D+15}], v[{YF+4*s}:{YF+4*s+3}], v[{r}:{r+3}], ' + ('0' if s == 0 else f'v[{D}:{D+15}]'))
            if s + NXB < 16: xread(s + NXB)
        a(f'''s_and_b32 s{S_T1}, s{S_W}, 1
        s_mul_i32 s{S_T0}, s{S_W}, {IMG}
        v_lshl_add_u32 v40, v18, 4, s{S_T0}
        s_xor_b32 s{S_T2}, s{S_W}, 1
        s_mul_i32 s{S_T2}, s{S_T2}, {IMG}
        v_lshl_add_u32 v41, v18, 4, s{S_T2}
        s_lshr_b32 s{S_T3}, s{S_W}, 1
        s_mul_i32 s{S_T3}, s{S_T3}, {4*KCS}
        s_add_u32 s{S_T3}, s{S_T3}, {L_KC+496}
        v_lshlrev_b32 v42, 4, v18
        v_sub_u32 v42, s{S_T3}, v42
        v_and_b32 v43, 1, v{V_LANE}
        v_cmp_eq_u32 vcc, 1, v43
        s_cmp_eq_u32 s{S_T1}, 0
        s_cselect_b32 s{S_T4}, -1, 0
        s_cselect_b32 s{S_T5}, 0, -1
        s_mov_b32 exec_lo, s{S_T5}
        s_mov_b32 exec_hi, s{S_T4}''')
        for q in range(4):
            a.lds(f'ds_write_b128 v40, v[{D+4*q}:{D+4*q+3}] offset:{512*q}')
        a(f's_mov_b32 exec_lo, s{S_T4}\ns_mov_b32 exec_hi, s{S_T5}')
        a.wait_all(vm=False)
        a('s_barrier')
        for q in range(4):
            a.lds(f'ds_read_b128 v[{44+4*q}:{47+4*q}], v41 offset:{512*q}')
        a(f'''v_lshrrev_b32 v60, 2, v18
        v_mul_u32_u24 v60, {KCS}, v60
        v_and_b32 v61, 3, v18
        v_lshl_add_u32 v60, v61, 4, v60
        v_add_u32 v60, {L_KC+4096}, v60
        v_mov_b32 v64, 0
        v_mov_b32 v65, 0
        v_mov_b32 v66, 0
        v_mov_b32 v67, 0''')
        t = a.lg
        a.lds('ds_write_b128 v60, v[64:67]')
        a.wait(lg=t)
        for q in range(8):
            a(f'v_pk_add_f32 {P(D+2*q)}, {P(D+2*q)}, {P(44+2*q)}')
        ch = [0]
        def chunk(blk, pairs):
            t = 44 + 4 * ch[0]; ch[0] += 1
            for k, (lo, hi) in enumerate(pairs):
                a(f'v_cvt_pk_bf16_f32 v{t+k}, v{lo}, v{hi}')
            a(f'ds_write_b128 v42, v[{t}:{t+3}] offset:{3584-512*blk}')
        l1 = self.lab(); l2 = self.lab()
        a(f's_cmp_eq_u32 s{S_T1}, 0\ns_cbranch_scc0 {l1}')
        chunk(0, [(D+7, D+6), (D+5, D+4), (D+3, D+2), (D+1, D+0)])
        chunk(1, [(D+12, D+11), (D+10, D+10), (D+10, D+9), (D+8, D+8)])
        chunk(2, [(D+15, D+15), (D+14, D+14), (D+14, D+13), (D+13, D+13)])
        a(f's_branch {l2}\n{l1}:')
        ch[0] = 0
        chunk(3, [(D+2, D+2), (D+1, D+1), (D+1, D+0), (D+0, D+0)])
        for k in range(4):
            p0, p8 = D + 3 + 2*k, D + 4 + 2*k
            a(f'v_cndmask_b32 v43, v{p0}, v{p8}, vcc')
            chunk(4 + k, [(p8, p8), (p8, 43), (p0, p0), (p0, p0)])
        a(f'{l2}:\ns_mov_b64 exec, -1')
        a.wait_all(vm=False, force=True)
        a('s_barrier')
        a(f'v_lshlrev_b32 v40, 4, v0\nv_add_u32 v40, {L_KC}, v40')
        for c in range(2):
            b = 44 + 24 * c
            a.lds(f'ds_read_b128 v[{b}:{b+3}], v40 offset:{c*4*KCS}')
            tk[c] = a.lds(f'ds_read_b64 v[{b+4}:{b+5}], v40 offset:{c*4*KCS+16}')
        for c in range(2):
            b = 44 + 24 * c
            a.wait(lg=tk[c])
            for k in range(4): a(f'v_alignbit_b32 v{b+8+k}, v{b+k+1}, v{b+k}, 16')
            a.lds(f'ds_write_b128 v40, v[{b+8}:{b+11}] offset:{(c*4+1)*KCS}')
            a(f'v_pk_mov_b32 {P(b+12)}, {P(b)}, {P(b+2)} op_sel:[1,0]\nv_pk_mov_b32 {P(b+14)}, {P(b+2)}, {P(b+4)} op_sel:[1,0]')
            a.lds(f'ds_write_b128 v40, v[{b+12}:{b+15}] offset:{(c*4+2)*KCS}')
            for k in range(4): a(f'v_alignbit_b32 v{b+16+k}, v{b+k+2}, v{b+k+1}, 16')
            a.lds(f'ds_write_b128 v40, v[{b+16}:{b+19}] offset:{(c*4+3)*KCS}')

    def conv(self):
        a = self.a
        P = lambda r: f'v[{r}:{r+1}]'
        BASE = 16
        XA = 32
        ST = 40
        for k in range(4):
            t_st = a.vmem(f'buffer_load_dwordx4 v[{ST+4*k}:{ST+4*k+3}], v{V_ST}, s[{R_WS}:{R_WS+3}], s{S_STIN} offen offset:{16*k} sc1')
        a.vmem(f'buffer_load_dwordx4 v[{XA}:{XA+3}], v{V_XIN}, s[{R_WS}:{R_WS+3}], s{S_XIN} offen sc1')
        t_x = a.vmem(f'buffer_load_dwordx4 v[{XA+4}:{XA+7}], v{V_XIN}, s[{R_WS}:{R_WS+3}], s{S_XIN} offen offset:16 sc1')
        RS, CC, U = 56, 64, 72
        a(f'v_mov_b32 v96, s{S_K2}\nv_mov_b32 v97, s{S_K2+1}')
        a.wait(vm=t_st)
        for i in range(8): a(f'v_pk_fma_f32 {P(ST+2*i)}, {P(ST+2*i)}, s[{S_K1}:{S_K1+1}], v[96:97]')
        for i in range(8): a(f'v_fma_f32 v{RS+i}, -v{ST+2*i}, v{ST+2*i}, v{ST+2*i+1}')
        for i in range(8): a(f'v_max_f32 v{RS+i}, v97, v{RS+i}')
        for i in range(8): a(f'v_rsq_f32 v{RS+i}, v{RS+i}')
        for i in range(8): a(f'v_mul_f32_e64 v{CC+i}, -v{ST+2*i}, v{RS+i}')
        a.wait(vm=t_x)
        for i in range(8):
            a(f'v_lshlrev_b32 v{BASE+2*i}, 16, v{XA+i}\nv_and_b32 v{BASE+2*i+1}, 0xffff0000, v{XA+i}')
        for c in range(2):
            for i in range(4):
                a(f'v_pk_fma_f32 {P(U+8*c+2*i)}, {P(BASE+8*c+2*i)}, {P(RS+2*i)}, {P(CC+2*i)}')
            for i in range(4):
                a(f'v_cvt_pk_bf16_f32 v{88+4*c+i}, v{U+8*c+2*i}, v{U+8*c+2*i+1}')
            a.lds(f'ds_write_b128 v{V_UW}, v[{88+4*c}:{91+4*c}] offset:{c*UIS}')
        for c in range(2):
            sel = 'op_sel_hi:[1,0,1]' if c == 0 else 'op_sel:[0,1,0]'
            for i in range(4):
                a(f'v_pk_fma_f32 {P(BASE+8*c+2*i)}, {P(U+8*c+2*i)}, s[{S_DK}:{S_DK+1}], {P(BASE+8*c+2*i)} {sel}')
        a.wait_all(vm=False)
        a('s_barrier')
        self.ts(1, True)
        seq = []
        for ii in range(4):
            if ii == 0 or ii == 2:
                s = [(q, p) for p in range(7, -1, -1) for q in range(8 - p)]
            elif ii == 1:
                s = [(q, p) for q in range(8) for p in range(8 - q)]
            else:
                s = [(q, cb - q) for cb in range(8) for q in range(cb + 1)]
            seq += [(ii, q, p) for q, p in s]
        first = {}; last = {}
        for n, (ii, q, p) in enumerate(seq):
            for key in (('A', ii, q), ('B', ii, p)):
                first.setdefault(key, n); last[key] = n
        order = sorted(first, key=lambda k: first[k])
        pool = [32 + 4 * i for i in range(27)]
        reg = {}; tok = {}; nxt = [0]
        ACC = 224
        def issue(n, maxn):
            cnt = 0
            while nxt[0] < len(order) and pool and cnt < maxn:
                key = order[nxt[0]]
                if first[key] > n + 40: break
                if a.lg - a.lg_done > 12: break
                r = pool.pop(0); reg[key] = r
                kind, ii, x = key
                if kind == 'A':
                    off = 64 * (3 - ii) + 512 * (7 - x)
                    a.lds(f'ds_read_b64 v[{r}:{r+1}], v{V_CA} offset:{off}')
                    tok[key] = a.lds(f'ds_read_b64 v[{r+2}:{r+3}], v{V_CA} offset:{off+8}')
                    cnt += 2
                else:
                    tok[key] = a.lds(f'ds_read_b128 v[{r}:{r+3}], v{V_CB} offset:{64*(3-ii)+512*x}')
                    cnt += 1
                nxt[0] += 1
        issue(0, 12)
        started = set(); pend = []
        for n, (ii, q, p) in enumerate(seq):
            ka, kb = ('A', ii, q), ('B', ii, p)
            while ka not in tok or kb not in tok:
                a.wait(lg=a.lg - 8); issue(n, 3)
            a.wait(lg=max(tok[ka], tok[kb]))
            cb = q + p
            acc = f'a[{ACC+4*cb}:{ACC+4*cb+3}]'
            a(f'v_mfma_f32_16x16x32_bf16 {acc}, v[{reg[ka]}:{reg[ka]+3}], v[{reg[kb]}:{reg[kb]+3}], ' + (acc if cb in started else '0'))
            started.add(cb)
            for key in (ka, kb):
                if last[key] == n: pool.append(reg[key])
            if ii == 3 and p == 0: pend.append((n, cb))
            if pend and n - pend[0][0] >= 5:
                _, c2 = pend.pop(0)
                a.lds(f'ds_write_b128 v{V_PW}, a[{ACC+4*c2}:{ACC+4*c2+3}] offset:{256*c2}')
            else:
                issue(n, 1)
        for _, c2 in pend:
            a.lds(f'ds_write_b128 v{V_PW}, a[{ACC+4*c2}:{ACC+4*c2+3}] offset:{256*c2}')
        a.wait_all(vm=False)
        a('s_barrier')
        self.ts(2, True)
        tk = {}
        for c in range(2):
            for v in range(2):
                for hh in range(2):
                    r = 32 + 16 * c + 8 * v + 4 * hh
                    tk[c, v] = a.lds(f'ds_read_b128 v[{r}:{r+3}], v{V_PR} offset:{(2*c+v)*PWS + hh*PH}')
        for c in range(2):
            for v in range(2):
                a.wait(lg=tk[c, v])
                for i in range(4):
                    a(f'v_pk_add_f32 {P(BASE+8*c+2*i)}, {P(BASE+8*c+2*i)}, {P(32+16*c+8*v+2*i)}')
            for i in range(4):
                a(f'v_cvt_pk_bf16_f32 v{64+4*c+i}, v{BASE+8*c+2*i}, v{BASE+8*c+2*i+1}')
            a.vmem(f'buffer_store_dwordx4 v[{64+4*c}:{67+4*c}], v{V_XOUT}, s[{R_WS}:{R_WS+3}], s{S_XOUT} offen offset:{64*c} sc1')

    def weights(self):
        a = self.a
        P = lambda r: f'v[{r}:{r+1}]'
        VA, VR = 16, 17
        a(f'''s_mul_i32 s{S_T4}, s{S_W}, {SLOT}
        v_add_u32 v{VR}, s{S_T4}, v{V_TR}
        v_lshrrev_b32 v18, 2, v{V_LANE}
        v_and_b32 v19, 3, v{V_LANE}
        v_mul_u32_u24 v{VA}, 3584, v18
        v_lshl_add_u32 v{VA}, v19, 4, v{VA}
        s_lshl_b32 s{S_T0}, s{S_NB}, 2
        s_add_u32 s{S_T0}, s{S_T0}, s{S_W}
        s_lshl_b32 s{S_T0}, s{S_T0}, 6''')
        def batch(srd, steps, dests):
            for i in range(28):
                a(f's_add_u32 m0, s{S_T4}, {1024*i}')
                a.vmem(f'buffer_load_dwordx4 v{VA}, s[{srd}:{srd+3}], s{S_T0} offen lds')
                a(steps(i))
            base = a.vm - 28
            for i in range(28):
                if i % 4 == 0: a.wait(vm=base + min(i + 4, 28))
                k, r = dests(i)
                a.lds(f'ds_read_b64_tr_b16 {k}[{r}:{r+1}], v{VR} offset:{1024*i}')
                a.lds(f'ds_read_b64_tr_b16 {k}[{r+2}:{r+3}], v{VR} offset:{1024*i+512}')
            a.wait_all(vm=False)
        batch(R_W1, lambda i: f's_add_u32 s{S_T0}, s{S_T0}, {16*3584}', lambda i: ('v', V_W1 + 4 * i))
        a(f'''s_lshl_b32 s{S_T1}, s{S_W}, 1
        s_and_b32 s{S_T2}, s{S_T1}, 2
        v_xor_b32 v19, s{S_T2}, v19
        v_mul_u32_u24 v{VA}, 896, v18
        v_lshl_add_u32 v{VA}, v19, 4, v{VA}
        s_mul_i32 s{S_T0}, s{S_W}, {448*896}
        s_lshl_b32 s{S_T1}, s{S_CB}, 7
        s_add_u32 s{S_T0}, s{S_T0}, s{S_T1}
        s_lshr_b32 s{S_T1}, s{S_W}, 1
        s_lshl_b32 s{S_T1}, s{S_T1}, 6
        s_add_u32 s{S_T0}, s{S_T0}, s{S_T1}''')
        for b in range(2):
            batch(R_W2, lambda i: (f's_xor_b32 s{S_T0}, s{S_T0}, 64' + ('' if i % 2 == 0 else f'\ns_add_u32 s{S_T0}, s{S_T0}, {16*896}')),
                  lambda i: ('a', 112 * b + 4 * i))
        a(f's_mov_b32 s{S_T7}, 0x3f803f80\nv_mov_b32 v20, 0\nv_mov_b32 v21, 0')
        for r in range(112): a(f'v_dot2c_f32_bf16 v{20+(r&1)}, s{S_T7}, v{V_W1+r}')
        a(f'''v_add_f32 v20, v20, v21
        v_mov_b32 v21, v20
        v_permlane32_swap_b32 v20, v21
        v_add_f32 v20, v20, v21
        v_mul_f32 v20, {fx(-1/448)}, v20''')
        for r in range(112):
            t = 22 + 2 * (r % 4)
            a(f'''v_lshlrev_b32 v{t}, 16, v{V_W1+r}
            v_and_b32 v{t+1}, 0xffff0000, v{V_W1+r}
            v_pk_add_f32 {P(t)}, {P(t)}, {P(20)} op_sel_hi:[1,0]
            v_cvt_pk_bf16_f32 v{V_W1+r}, v{t}, v{t+1}''')

    def hflag(self, half):
        a = self.a
        l1 = self.lab(); l2 = self.lab()
        a(f'''s_lshl_b32 s{S_T0}, s{S_NB}, 2
        s_add_u32 s{S_T0}, s{S_T0}, s{S_W}
        s_lshl_b32 s{S_T0}, s{S_T0}, 2
        s_add_u32 s{S_T0}, s{S_T0}, s{S_HF}
        v_mov_b32 v{V_T0}, s{S_TAG}
        s_cmp_eq_u32 s{S_LOCAL}, 1
        s_cbranch_scc1 {l1}
        buffer_wbl2 sc1
        s_waitcnt vmcnt(0)
        buffer_store_dword v{V_T0}, off, s[{R_WS}:{R_WS+3}], s{S_T0} offset:{256*half} sc1
        s_branch {l2}
        {l1}:''')
        a.vmem(f'buffer_store_dword v{V_T0}, off, s[{R_WS}:{R_WS+3}], s{S_T0} offset:{256*half}')
        a(f'{l2}:')
    def hwait(self, half):
        a = self.a
        lp = self.lab(); dn = self.lab(); sk = self.lab()
        a(f'''s_mul_i32 s{S_T0}, s{S_W}, 56
        s_add_u32 s{S_T0}, s{S_T0}, s{S_HF}
        v_min_u32 v{V_T1}, 13, v{V_LANE}
        v_lshlrev_b32 v{V_T1}, 2, v{V_T1}
        {lp}:
        buffer_load_dword v{V_T2}, v{V_T1}, s[{R_WS}:{R_WS+3}], s{S_T0} offen offset:{256*half} sc1
        s_waitcnt vmcnt(0)
        v_cmp_ne_u32 vcc, s{S_TAG}, v{V_T2}''')
        self.spin_tail(lp, dn)
        a(f'''s_cmp_eq_u32 s{S_LOCAL}, 1
        s_cbranch_scc1 {sk}
        buffer_inv sc1
        s_waitcnt vmcnt(0)
        {sk}:''')
        a.vm_done = a.vm

    def gemm1(self):
        a = self.a
        tl = [S_T4, S_T5, S_T6, S_T7]
        a(f'''s_mov_b32 s{S_T4}, s{S_TE}
        s_xor_b32 s{S_T5}, s{S_TE}, 1
        s_mov_b32 s{S_T6}, s{S_TL}
        s_xor_b32 s{S_T7}, s{S_TL}, 1
        s_mul_i32 s{S_T3}, s{S_W}, 7168''')
        tdma = []
        for s in range(4):
            a(f'''s_mul_i32 s{S_T0}, s{tl[s]}, {SLOT}
            s_add_u32 s{S_T0}, s{S_T0}, s{S_XOUT}
            s_add_u32 s{S_T0}, s{S_T0}, s{S_T3}
            s_add_u32 m0, s{S_T3}, {s*SLOT}''')
            for i in range(7):
                if i == 4:
                    a(f's_add_u32 s{S_T0}, s{S_T0}, 4096\ns_add_u32 m0, s{S_T3}, {s*SLOT+4096}')
                t = a.vmem(f'buffer_load_dwordx4 v{V_L16}, s[{R_WS}:{R_WS+3}], s{S_T0} offen offset:{1024*(i%4)} sc1 lds')
            tdma.append(t)
        a(f'''s_lshl_b32 s{S_T0}, s{S_NB}, 2
        s_add_u32 s{S_T0}, s{S_T0}, s{S_W}
        s_lshl_b32 s{S_T0}, s{S_T0}, 11
        s_add_u32 s{S_T0}, s{S_T0}, s{S_HB}''')
        for s in range(4):
            a(f's_mul_i32 s{tl[s]}, s{tl[s]}, 114688\ns_add_u32 s{tl[s]}, s{tl[s]}, s{S_T0}')
        a(f'v_add_u32 v{V_T3}, {2*SLOT}, v{V_TR}')
        ACC = [16, 32]; FR = 48; NF = 7; PK = 80
        tok = {}
        def rd(f):
            s, k = divmod(f, 28)
            r = FR + 4 * (f % NF)
            va = V_TR if s < 2 else V_T3
            off = (s & 1) * SLOT + 1024 * k
            a.lds(f'ds_read_b64_tr_b16 v[{r}:{r+1}], v{va} offset:{off}')
            tok[f] = a.lds(f'ds_read_b64_tr_b16 v[{r+2}:{r+3}], v{va} offset:{off+512}')
        def epi_ops(s):
            c = ACC[s & 1]; ops = []
            for hh in range(2):
                for i in range(4):
                    ops.append(('v', f'v_cvt_pk_bf16_f32 v{PK+4*hh+i}, v{c+8*hh+2*i}, v{c+8*hh+2*i+1}'))
                for i in range(4):
                    ops.append(('v', f'v_pk_max_i16 v{PK+4*hh+i}, v{PK+4*hh+i}, 0'))
                ops.append(('m', f'buffer_store_dwordx4 v[{PK+4*hh}:{PK+4*hh+3}], v{V_L16}, s[{R_WS}:{R_WS+3}], s{tl[s]} offen offset:{1024*hh}'))
            return ops
        PD = NF - 1
        a.wait(vm=tdma[0]); a('s_barrier')
        self.ts(4, True)
        for f in range(PD): rd(f)
        ops = []; tst = {}
        for f in range(112):
            s, k = divmod(f, 28)
            if k == 0 and s > 0: ops = epi_ops(s - 1)
            a.wait(lg=tok[f])
            c = ACC[s & 1]; r = FR + 4 * (f % NF)
            a(f'v_mfma_f32_32x32x16_bf16 v[{c}:{c+15}], v[{V_W1+4*k}:{V_W1+4*k+3}], v[{r}:{r+3}], ' + ('0' if k == 0 else f'v[{c}:{c+15}]'))
            if k == 28 - PD and s < 3:
                a.wait(vm=tdma[s + 1])
                a('s_barrier')
            if s == 3 and k == 8:
                a.wait(vm=tst[1]); self.hflag(0)
            if f + PD < 112: rd(f + PD)
            if k >= 3 and ops:
                kind, t = ops.pop(0)
                if kind == 'v': a(t)
                else: tst[s - 1] = a.vmem(t)
        for kind, t in epi_ops(3):
            if kind == 'v': a(t)
            else: tst[3] = a.vmem(t)
        a.wait_all()
        self.hflag(1)
        a('s_barrier')

    def gemm2(self):
        a = self.a
        P = lambda r: f'v[{r}:{r+1}]'
        ACC = 16
        ring = [('v', 80 + 4 * i) for i in range(10)] + [('a', 224 + 4 * i) for i in range(8)]
        NH = len(ring)
        SF = 120
        SA = 128
        RES = 132
        self.hwait(0)
        self.hwait(1)
        self.ts(5, True)
        a(f'''s_mul_i32 s{S_T3}, s{S_W}, {SLOT}
        s_add_u32 s{S_T3}, s{S_T3}, s{S_HB}
        s_mul_i32 s{S_T4}, s{S_TE}, 114688
        s_add_u32 s{S_T4}, s{S_T4}, s{S_T3}
        s_mul_i32 s{S_T5}, s{S_TL}, 114688
        s_add_u32 s{S_T5}, s{S_T5}, s{S_T3}''')
        tok = {}
        def ld(f):
            tt, k = divmod(f, 28)
            so = S_T4 + tt
            kind, r = ring[f % NH]
            tok[f] = a.vmem(f'buffer_load_dwordx4 {kind}[{r}:{r+3}], v{V_L16}, s[{R_WS}:{R_WS+3}], s{so} offen offset:{1024*(k%4)} sc1')
            if k % 4 == 3: a(f's_add_u32 s{so}, s{so}, 4096')
        for f in range(NH - 1): ld(f)
        a(f'''s_mul_i32 s{S_T0}, s{S_W}, 7168
        v_add_u32 v{V_T0}, s{S_T0}, v{V_TR}
        v_add_u32 v{V_T1}, {2*SLOT}, v{V_T0}
        s_lshl_b32 s{S_T0}, s{S_CB}, 2
        s_add_u32 s{S_T0}, s{S_T0}, s{S_W}
        s_lshl_b32 s{S_T0}, s{S_T0}, 10
        v_add_u32 v{V_T2}, s{S_T0}, v{V_TR}
        s_mov_b32 s{S_T7}, 0x3f803f80''')
        for i in range(4): a(f'v_mov_b32 v{SA+i}, 0')
        a.lds(f'ds_read_b64_tr_b16 v[{RES}:{RES+1}], v{V_T2}')
        a.lds(f'ds_read_b64_tr_b16 v[{RES+2}:{RES+3}], v{V_T2} offset:512')
        a.lds(f'ds_read_b64_tr_b16 v[{RES+4}:{RES+5}], v{V_T2} offset:{2*SLOT}')
        a.lds(f'ds_read_b64_tr_b16 v[{RES+6}:{RES+7}], v{V_T2} offset:{2*SLOT+512}')
        sh = []
        stok = {}
        def srd(n):
            tt, k = divmod(n, 7); r = SF + 4 * (n & 1); va = V_T0 + tt
            a.lds(f'ds_read_b64_tr_b16 v[{r}:{r+1}], v{va} offset:{1024*k}')
            stok[n] = a.lds(f'ds_read_b64_tr_b16 v[{r+2}:{r+3}], v{va} offset:{1024*k+512}')
        srd(0); srd(1)
        for n in range(14):
            tt = n // 7; r = SF + 4 * (n & 1)
            for i in range(4):
                def op(n=n, i=i, tt=tt, r=r):
                    if i == 0: a.wait(lg=stok[n])
                    a(f'v_dot2c_f32_bf16 v{SA+2*tt}, s{S_T7}, v{r+i}\nv_dot2c_f32_bf16 v{SA+2*tt+1}, v{r+i}, v{r+i}')
                    if i == 3 and n + 2 < 14: srd(n + 2)
                sh.append(op)
        def fin():
            a(f'''v_permlane32_swap_b32 v{SA}, v{SA+1}
            v_permlane32_swap_b32 v{SA+2}, v{SA+3}
            v_and_b32 v{V_T0}, 31, v{V_LANE}
            v_lshlrev_b32 v{V_T0}, 5, v{V_T0}
            v_add_u32 v{V_T0}, {L_MISC}, v{V_T0}
            v_lshrrev_b32 v{V_T1}, 5, v{V_LANE}
            v_lshl_add_u32 v{V_T1}, v{V_T1}, 2, v{V_T0}
            s_lshl_b32 s{S_T0}, s{S_W}, 3
            v_add_u32 v{V_T1}, s{S_T0}, v{V_T1}
            v_add_f32 v{SA}, v{SA}, v{SA+1}
            v_add_f32 v{SA+2}, v{SA+2}, v{SA+3}''')
            a.lds(f'ds_write_b32 v{V_T1}, v{SA}')
            a.lds(f'ds_write_b32 v{V_T1}, v{SA+2} offset:1024')
        sh.append(fin)
        for f in range(56):
            tt, k = divmod(f, 28)
            a.wait(vm=tok[f])
            kind, r = ring[f % NH]
            for dt in range(2):
                c = ACC + 32 * tt + 16 * dt
                w = 8 * k + 4 * dt
                a(f'v_mfma_f32_32x32x16_bf16 v[{c}:{c+15}], a[{w}:{w+3}], {kind}[{r}:{r+3}], ' + ('0' if k == 0 else f'v[{c}:{c+15}]'))
                if dt == 0 and f + NH - 1 < 56: ld(f + NH - 1)
                if sh: sh.pop(0)()
        assert not sh
        self.ts(6, True)
        for lam in range(1, 4):
            a(f'''s_xor_b32 s{S_T0}, s{S_W}, {lam}
            s_mul_i32 s{S_T0}, s{S_T0}, 6144
            s_add_u32 s{S_T0}, s{S_T0}, {SLOT + (lam-1)*2048}
            v_add_u32 v{80+lam}, s{S_T0}, v{V_L16}''')
        a(f'''s_mul_i32 s{S_T0}, s{S_W}, 6144
        s_add_u32 s{S_T0}, s{S_T0}, {SLOT}
        v_add_u32 v80, s{S_T0}, v{V_L16}''')
        for tt in range(2):
            for lam in range(1, 4):
                for q in range(2):
                    c = ACC + 32 * tt + 8 * lam + 4 * q
                    a.lds(f'ds_write_b128 v{80+lam}, v[{c}:{c+3}] offset:{2*SLOT*tt + 1024*q}')
        a.wait_all(vm=False)
        a('s_barrier')
        RS = 84; OUTP = 88
        tk = {}
        for tt in range(2):
            a.lds(f'ds_read_b128 v[{96+8*tt}:{99+8*tt}], v{V_T0} offset:{1024*tt}')
            tk['s', tt] = a.lds(f'ds_read_b128 v[{100+8*tt}:{103+8*tt}], v{V_T0} offset:{1024*tt+16}')
        for tt in range(2):
            for n in range(6):
                c = ACC + 32 * tt + 8 + 4 * n
                tk[tt, n] = a.lds(f'ds_read_b128 v[{c}:{c+3}], v80 offset:{2*SLOT*tt + 1024*n}')
        a(f'v_mov_b32 v112, s{S_K2}\nv_mov_b32 v113, s{S_K2+1}')
        for tt in range(2):
            b = 96 + 8 * tt
            a.wait(lg=tk['s', tt])
            a(f'''v_pk_add_f32 {P(b)}, {P(b)}, {P(b+2)}
            v_pk_add_f32 {P(b+4)}, {P(b+4)}, {P(b+6)}
            v_pk_add_f32 {P(b)}, {P(b)}, {P(b+4)}
            v_pk_fma_f32 {P(b)}, {P(b)}, s[{S_K1}:{S_K1+1}], v[112:113]
            v_fma_f32 v{b+1}, -v{b}, v{b}, v{b+1}
            v_max_f32 v{b+1}, v113, v{b+1}
            v_rsq_f32 v{RS+2*tt}, v{b+1}''')
        for tt in range(2):
            c = ACC + 32 * tt
            for i in range(4):
                a(f'v_lshlrev_b32 v{96+8*tt+2*i}, 16, v{RES+4*tt+i}\nv_and_b32 v{97+8*tt+2*i}, 0xffff0000, v{RES+4*tt+i}')
            for n in range(6):
                a.wait(lg=tk[tt, n])
                for i in range(2):
                    d = c + 4 * (n & 1) + 2 * i
                    a(f'v_pk_add_f32 {P(d)}, {P(d)}, {P(c+8+4*n+2*i)}')
            for i in range(4):
                a(f'v_pk_fma_f32 {P(c+2*i)}, {P(c+2*i)}, {P(RS+2*tt)}, {P(96+8*tt+2*i)} op_sel_hi:[1,0,1]')
            for i in range(4):
                a(f'v_cvt_pk_bf16_f32 v{OUTP+4*tt+i}, v{c+2*i}, v{c+2*i+1}')
        self.OUTP = OUTP

    def out_mid(self):
        a = self.a
        OUTP = self.OUTP
        RP = 40
        a(f'''s_mul_i32 s{S_T0}, s{S_W}, {64*RP}
        v_and_b32 v16, 31, v{V_LANE}
        v_lshrrev_b32 v17, 5, v{V_LANE}
        v_mul_u32_u24 v18, {RP}, v16
        v_lshl_add_u32 v18, v17, 3, v18
        v_add_u32 v18, s{S_T0}, v18''')
        for tt in range(2):
            a.lds(f'ds_write_b64 v18, v[{OUTP+4*tt}:{OUTP+4*tt+1}] offset:{32*RP*tt}')
            a.lds(f'ds_write_b64 v18, v[{OUTP+4*tt+2}:{OUTP+4*tt+3}] offset:{32*RP*tt+16}')
        a(f'''v_lshrrev_b32 v19, 4, v{V_LANE}
        v_bfe_u32 v20, v{V_LANE}, 2, 2
        v_lshl_add_u32 v20, v19, 3, v20
        v_mul_u32_u24 v20, {RP}, v20
        v_and_b32 v21, 3, v{V_LANE}
        v_lshl_add_u32 v20, v21, 3, v20
        v_add_u32 v20, s{S_T0}, v20''')
        tk = {}
        for tt in range(2):
            a.lds(f'ds_read_b64_tr_b16 v[{24+4*tt}:{25+4*tt}], v20 offset:{32*RP*tt}')
            tk[tt] = a.lds(f'ds_read_b64_tr_b16 v[{26+4*tt}:{27+4*tt}], v20 offset:{32*RP*tt+4*RP}')
        for i in range(4): a(f'v_mov_b32 v{32+i}, 0')
        for tt in range(2):
            for i in range(4):
                a(f'v_dot2c_f32_bf16 v{32+2*tt}, s{S_T7}, v{OUTP+4*tt+i}\nv_dot2c_f32_bf16 v{33+2*tt}, v{OUTP+4*tt+i}, v{OUTP+4*tt+i}')
        a(f'''v_mul_u32_u24 v22, 7168, v19
        v_and_b32 v21, 15, v{V_LANE}
        v_lshl_add_u32 v22, v21, 4, v22
        s_lshl_b32 s{S_T0}, s{S_CB}, 2
        s_add_u32 s{S_T0}, s{S_T0}, s{S_W}
        s_lshl_b32 s{S_T0}, s{S_T0}, 8
        s_add_u32 s{S_T0}, s{S_T0}, {WS_X2}
        s_mul_i32 s{S_T1}, s{S_TE}, {SLOT}
        s_add_u32 s{S_T1}, s{S_T1}, s{S_T0}
        s_add_u32 s{S_T2}, s{S_T1}, {32*SLOT}
        v_permlane32_swap_b32 v32, v33
        v_permlane32_swap_b32 v34, v35
        s_lshl_b32 s{S_T0}, s{S_W}, 2
        v_add_u32 v23, {L_MISC+2048}, v{V_L16}
        v_add_u32 v36, s{S_T0}, v23
        v_add_f32 v32, v32, v33
        v_add_f32 v34, v34, v35''')
        a.lds('ds_write_b32 v36, v32')
        a.lds('ds_write_b32 v36, v34 offset:1024')
        for tt in range(2):
            a.wait(lg=tk[tt])
            a.vmem(f'buffer_store_dwordx4 v[{24+4*tt}:{27+4*tt}], v22, s[{R_WS}:{R_WS+3}], s{S_T1+tt} offen sc1')
        a.wait_all(vm=False)
        a('s_barrier')
        sk = self.lab()
        a(f'''s_cmp_ge_u32 s{S_W}, 2
        s_cbranch_scc1 {sk}
        s_lshl_b32 s{S_T0}, s{S_W}, 10
        v_add_u32 v23, s{S_T0}, v23
        ds_read_b128 v[40:43], v23
        s_lshl_b32 s{S_T0}, s{S_W}, 5
        s_add_u32 s{S_T0}, s{S_T0}, s{S_TE}
        s_lshl_b32 s{S_T0}, s{S_T0}, 8
        s_add_u32 s{S_T0}, s{S_T0}, {WS_ST2}
        v_lshlrev_b32 v16, 3, v16
        v_lshl_add_u32 v16, v17, 2, v16
        s_waitcnt lgkmcnt(0)
        v_add_f32 v40, v40, v41
        v_add_f32 v42, v42, v43
        v_add_f32 v40, v40, v42
        buffer_atomic_add_f32 v40, v16, s[{R_WS}:{R_WS+3}], s{S_T0} offen
        {sk}:''')

    def out_final(self):
        a = self.a
        OUTP = self.OUTP
        a(f'''v_and_b32 v16, 31, v{V_LANE}
        v_lshrrev_b32 v17, 5, v{V_LANE}
        v_mul_u32_u24 v18, 896, v16
        v_lshl_add_u32 v18, v17, 4, v18
        s_lshl_b32 s{S_T0}, s{S_CB}, 2
        s_add_u32 s{S_T0}, s{S_T0}, s{S_W}
        s_lshl_b32 s{S_T0}, s{S_T0}, 5
        s_mul_i32 s{S_T1}, s{S_TE}, {SLOT}
        s_add_u32 s{S_T0}, s{S_T0}, s{S_T1}
        v_add_u32 v18, s{S_T0}, v18
        v_add_u32 v19, {32*SLOT}, v18''')
        for tt in range(2):
            o = OUTP + 4 * tt
            a(f'v_permlane32_swap_b32 v{o}, v{o+2}\nv_permlane32_swap_b32 v{o+1}, v{o+3}')
            a.vmem(f'global_store_dwordx4 v{18+tt}, v[{o}:{o+3}], s[{S_OUT}:{S_OUT+1}]')

    def helper(self):
        a = self.a
        a('L_helper:')
        self.flag0()
        lp = self.lab()
        a(f'''v_lshlrev_b32 v16, 7, v0
        s_lshr_b32 s{S_T0}, s2, 3
        s_lshl_b32 s{S_T0}, s{S_T0}, 15''')
        for srd in (R_W1, R_W2):
            a(f's_mov_b32 s{S_T1}, s{S_T0}')
            for i in range(13):
                a(f'buffer_load_dword v{20+i}, v16, s[{srd}:{srd+3}], s{S_T1} offen\ns_add_u32 s{S_T1}, s{S_T1}, {4*32768}')
        a('s_waitcnt vmcnt(0)\ns_branch L_end')

    def dump_ts(self):
        a = self.a
        if not self.diag: return
        a.wait_all(force=True)
        self.ts(19 - 0, False)
        a(f'''s_lshl_b32 s{S_T0}, s2, 2
        s_add_u32 s{S_T0}, s{S_T0}, s{S_W}
        s_lshl_b32 s{S_T0}, s{S_T0}, 7
        s_add_u32 s{S_T0}, s{S_T0}, {WS_TS}
        s_mov_b64 exec, 1''')
        for i in range(20):
            a(f'v_mov_b32 v16, s{S_TS+i}\nbuffer_store_dword v16, off, s[{R_WS}:{R_WS+3}], s{S_T0} offset:{4*i}')
        a(f'v_mov_b32 v16, s{S_SPIN}\nbuffer_store_dword v16, off, s[{R_WS}:{R_WS+3}], s{S_T0} offset:80')
        a(f'v_mov_b32 v16, s{S_LOCAL}\nbuffer_store_dword v16, off, s[{R_WS}:{R_WS+3}], s{S_T0} offset:84')

    def dump_lds(self, lo, n):
        a = self.a
        a.wait_all(force=True); a('s_barrier')
        a(f's_mul_i32 s{S_T0}, s2, 0x28000\ns_add_u32 s{S_T0}, s{S_T0}, {WS_DUMP}\nv_lshlrev_b32 v16, 4, v0\nv_add_u32 v17, {lo}, v16')
        for i in range((n + 4095) // 4096):
            a(f'''ds_read_b128 v[20:23], v17
            s_waitcnt lgkmcnt(0)
            buffer_store_dwordx4 v[20:23], v16, s[{R_WS}:{R_WS+3}], s{S_T0} offen
            s_waitcnt vmcnt(0)
            v_add_u32 v16, 4096, v16
            v_add_u32 v17, 4096, v17''')

    def build(self):
        a = self.a
        if self.diag:
            for i in range(20): a(f's_mov_b32 s{S_TS+i}, 0')
        self.entry()
        a('s_cmp_lt_u32 s2, 32\ns_cbranch_scc1 L_helper')
        st = (a.vm, a.vm_done, a.lg, a.lg_done)
        self.kgen()
        self.ts(17)
        if self.stop == 'kgen':
            self.dump_lds(L_KC, 8 * KCS); a('s_branch L_end')
        self.wait_flag0()
        self.ts(18)
        a.wait_all(force=True)
        a('L_layer:')
        self.conv()
        self.gsignal()
        self.ts(3, True)
        sk = self.lab()
        a(f's_cmp_lg_u32 s{S_LAYER}, 0\ns_cbranch_scc1 {sk}')
        self.weights()
        self.ts(16)
        a(f'{sk}:')
        self.gwait()
        self.gemm1()
        self.gemm2()
        a(f's_cmp_lg_u32 s{S_LAYER}, 0\ns_cbranch_scc1 L_final')
        sv = (a.vm, a.vm_done, a.lg, a.lg_done)
        self.out_mid()
        self.gsignal()
        self.ts(7)
        a(f'''s_mov_b32 s{S_LAYER}, 1
        s_mov_b32 s{S_XIN}, {WS_X2}
        s_mov_b32 s{S_STIN}, {WS_ST2}
        s_mov_b32 s{S_XOUT}, {WS_X3}
        s_mov_b32 s{S_HB}, {WS_H1}
        s_add_u32 s{S_HF}, s{S_HF}, 0x4000''')
        self.gwait()
        self.ts(8)
        a.wait_all(force=True)
        a('s_branch L_layer')
        a('L_final:')
        a.vm, a.vm_done, a.lg, a.lg_done = sv
        self.out_final()
        self.dump_ts()
        a('s_endpgm')
        a.vm, a.vm_done, a.lg, a.lg_done = st
        self.helper()
        a('L_end:\ns_endpgm')
        body = a.text()
        head = open('interleave_layers__ssm_conv_s4__dense_activation_relu__prompt.s.ref').read().split('; Override launch')[0]
        src = head + f'; @launch grid=(256,1,1) block=(256,1,1) lds={LDS_BYTES}\n'
        src += f'''.amdgcn_target "amdgcn-amd-amdhsa--gfx950"
.text
.globl {KNAME}
.p2align 8
.type {KNAME},@function
{KNAME}:
{body}
.section .rodata,"a"
.p2align 6
.amdhsa_kernel {KNAME}
  .amdhsa_next_free_vgpr 512
  .amdhsa_next_free_sgpr 102
  .amdhsa_accum_offset 256
  .amdhsa_group_segment_fixed_size 0
  .amdhsa_kernarg_size 120
  .amdhsa_user_sgpr_count 2
  .amdhsa_user_sgpr_kernarg_segment_ptr 1
  .amdhsa_system_sgpr_workgroup_id_x 1
  .amdhsa_float_denorm_mode_32 3
.end_amdhsa_kernel
'''
        return src

if __name__ == '__main__':
    import argparse
    ap = argparse.ArgumentParser()
    ap.add_argument('-o', default='k.s')
    ap.add_argument('--diag', action='store_true')
    ap.add_argument('--stop', default=None)
    args = ap.parse_args()
    g = Gen(args.diag, args.stop)
    open(args.o, 'w').write(g.build())
    print('wrote', args.o, 'auto nops', g.a.nops_added, 'lines', len(g.a.lines))
```

```python
import sys, struct
sys.path.insert(0, 'work')
from gasm import *

KNAME = 'interleave_layers__ssm_conv_s4__dense_activation_relu__prompt_kernel'
def f2u(x): return struct.unpack('<I', struct.pack('<f', x))[0]
def fx(x): return hex(f2u(x))

WS_EPOCH = 0x0
WS_FLG0 = 0x1000
WS_CNT = 0x4000
NSYNC = 3
WS_HFLG = 0x20000
WS_ST0 = 0x30000
WS_ST2 = 0x34000
WS_TS = 0x40000
WS_XT0 = 0x100000
WS_X1 = 0x300000
WS_X2 = 0x500000
WS_X3 = 0x700000
WS_H0 = 0x1000000
WS_H1 = 0x1800000
WS_DUMP = 0x2000000
WS_SIZE = 0x10000000

SLOT = 28672
L_KC = 114688
KCS = 4160
L_UI = 147968
UIS = 4608
L_MISC = 157184
LDS_BYTES = 163840
IMG = 60 * 528
L_TB = 126720
PH = 2112
PWS = 4 * PH

S_X0, S_ARE, S_AIM, S_BRE, S_BIM, S_CRE, S_CIM, S_LDT = 4, 6, 8, 10, 12, 14, 16, 18
S_DSK, S_W1, S_W2, S_OUT, S_DBG, S_WS = 20, 24, 26, 28, 30, 32
S_W, S_G, S_J, S_P, S_TAG, S_LAYER, S_SUB, S_NB, S_PI, S_CB = 34, 35, 36, 37, 38, 39, 40, 41, 42, 43
S_DK = 44
S_LOCAL, S_SPIN = 46, 47
S_T0, S_T1, S_T2, S_T3 = 48, 49, 50, 51
R_W1, R_W2, R_WS = 52, 56, 60
S_XIN, S_STIN, S_XOUT, S_HB, S_HF, S_CNT = 64, 65, 66, 67, 68, 69
S_K1 = 70
S_K2 = 72
S_T4, S_T5, S_T6, S_T7 = 74, 75, 76, 77
S_TE, S_TL = 78, 79
S_TS = 80
S_TSP = 100

V_TID, V_LANE, V_TR, V_L16, V_CA, V_CB, V_PW, V_PR, V_XIN, V_XOUT, V_ST, V_UW = range(12)
V_T0, V_T1, V_T2, V_T3 = 12, 13, 14, 15
V_W1 = 144

SPIN_MAX = 1 << 18

class Gen:
    def __init__(self, diag=False, stop=None, pad=None):
        self.pad = pad
        self.a = Asm(); self.diag = diag; self.stop = stop; self.nlab = 0; self.nts = 0
    def lab(self, p='L'):
        self.nlab += 1; return f'{p}{self.nlab}'
    def ts(self, idx, per_layer=False):
        if not self.diag: return
        a = self.a
        a.wait_all(vm=False, lg=True)
        a(f's_memrealtime s[{S_TSP}:{S_TSP+1}]\ns_waitcnt lgkmcnt(0)')
        if per_layer:
            l = self.lab()
            a(f's_cmp_eq_u32 s{S_LAYER}, 0\ns_cselect_b32 s{S_TS+idx}, s{S_TSP}, s{S_TS+idx}\ns_cselect_b32 s{S_TS+idx+8}, s{S_TS+idx+8}, s{S_TSP}')
        else:
            a(f's_mov_b32 s{S_TS+idx}, s{S_TSP}')

    def spin_tail(self, loop, done):
        a = self.a
        a(f'''s_cbranch_vccz {done}
        s_add_u32 s{S_SPIN}, s{S_SPIN}, 1
        s_cmp_lt_u32 s{S_SPIN}, {SPIN_MAX}
        s_cbranch_scc1 {loop}
        {done}:''')

    def gsignal(self):
        a = self.a
        a.wait_all(force=True)
        a('s_barrier')
        sk = self.lab()
        a(f'''s_cmp_lg_u32 s{S_W}, 0
        s_cbranch_scc1 {sk}
        s_lshl_b32 s{S_T0}, s{S_G}, 8
        s_add_u32 s{S_T0}, s{S_T0}, s{S_CNT}
        v_lshlrev_b32 v{V_T0}, 11, v{V_LANE}
        v_mov_b32 v{V_T1}, 1
        s_mov_b64 exec, 0xff
        buffer_atomic_add v{V_T1}, v{V_T0}, s[{R_WS}:{R_WS+3}], s{S_T0} offen
        s_mov_b64 exec, -1
        {sk}:''')
    def gwait(self):
        a = self.a
        sk = self.lab(); lp = self.lab(); dn = self.lab()
        a(f'''s_cmp_lg_u32 s{S_W}, 0
        s_cbranch_scc1 {sk}
        s_lshl_b32 s{S_T0}, s{S_G}, 11
        s_add_u32 s{S_T0}, s{S_T0}, s{S_CNT}
        v_and_b32 v{V_T0}, 7, v{V_LANE}
        v_lshlrev_b32 v{V_T0}, 8, v{V_T0}
        {lp}:
        buffer_load_dword v{V_T1}, v{V_T0}, s[{R_WS}:{R_WS+3}], s{S_T0} offen sc1
        s_waitcnt vmcnt(0)
        v_cmp_ne_u32 vcc, 28, v{V_T1}''')
        self.spin_tail(lp, dn)
        a(f'''{sk}:
        s_add_u32 s{S_CNT}, s{S_CNT}, 0x4000
        s_barrier''')
        a.wait_all(force=False)

    def entry(self):
        a = self.a
        a(f'''s_cmp_ge_u32 s2, 256
        s_cbranch_scc1 L_end
        s_load_dwordx16 s[4:19], s[0:1], 0
        s_load_dwordx8 s[20:27], s[0:1], 64
        s_load_dwordx4 s[28:31], s[0:1], 96
        s_load_dwordx2 s[32:33], s[0:1], 112''')
        if self.diag:
            a(f's_memrealtime s[{S_TSP}:{S_TSP+1}]')
        a(f'''s_getpc_b64 s[{S_T0}:{S_T1}]
        L_pcbase:
        s_lshr_b32 s{S_T2}, s2, 3
        s_min_u32 s{S_T2}, s{S_T2}, (L_end-L_pcbase)/4096-1
        s_lshl_b32 s{S_T2}, s{S_T2}, 12
        v_lshlrev_b32 v{V_T0}, 4, v0
        v_add_u32 v{V_T0}, s{S_T2}, v{V_T0}''')
        a.vmem(f'global_load_dwordx4 v[140:143], v{V_T0}, s[{S_T0}:{S_T1}]')
        a(f'''v_and_b32 v{V_LANE}, 63, v0
        v_lshrrev_b32 v{V_T1}, 6, v0
        v_lshlrev_b32 v{V_L16}, 4, v{V_LANE}
        v_readfirstlane_b32 s{S_W}, v{V_T1}
        s_and_b32 s{S_G}, s2, 7
        s_lshr_b32 s{S_J}, s2, 3
        s_sub_u32 s{S_J}, s{S_J}, 4
        s_max_i32 s{S_J}, s{S_J}, 0
        s_mul_i32 s{S_P}, s{S_G}, 28
        s_add_u32 s{S_P}, s{S_P}, s{S_J}
        s_mov_b32 s{S_SPIN}, 0
        s_mov_b32 s{S_LAYER}, 0''')
        a(f'''s_lshl_b32 s{S_T2}, s2, 2
        s_add_u32 s{S_T2}, s{S_T2}, s{S_W}
        s_mul_i32 s{S_T2}, s{S_T2}, 1792
        v_lshrrev_b32 v16, 5, v{V_LANE}
        v_and_b32 v17, 31, v{V_LANE}
        v_mul_u32_u24 v18, 896, v16
        v_lshl_add_u32 v18, v17, 4, v18
        v_add_u32 v18, s{S_T2}, v18''')
        for r in range(20, 28): a(f'v_mov_b32 v{r}, 0')
        a(f'''s_lshl_b32 s{S_T3}, s{S_P}, 2
        s_add_u32 s{S_T3}, s{S_T3}, s{S_W}
        s_lshl_b32 s{S_T3}, s{S_T3}, 8
        v_lshl_add_u32 v19, v{V_LANE}, 2, s{S_T3}
        v_mov_b32 v{V_T2}, 0
        s_lshl_b32 s{S_T4}, s{S_P}, 2
        s_waitcnt lgkmcnt(0)''')
        if self.diag: a(f's_mov_b32 s{S_TS}, s{S_TSP}')
        a(f'''s_mov_b32 exec_lo, 0x0fffffff
        s_mov_b32 exec_hi, 0x0fffffff''')
        a.vmem(f'global_load_dwordx4 v[20:23], v18, s[{S_X0}:{S_X0+1}]')
        t_rows = a.vmem(f'global_load_dwordx4 v[24:27], v18, s[{S_X0}:{S_X0+1}] offset:448')
        a('s_mov_b64 exec, -1')
        t_ep = a.vmem(f'global_load_dword v28, v{V_T2}, s[{S_WS}:{S_WS+1}] sc1')
        for i, s in enumerate((S_ARE, S_AIM, S_BRE, S_BIM, S_CRE, S_CIM)):
            self.t_par = a.vmem(f'global_load_dword v{30+i}, v19, s[{s}:{s+1}]')
        a(f'''s_load_dword s{S_T5}, s[{S_LDT}:{S_LDT+1}], s{S_T4}
        s_load_dword s{S_T6}, s[{S_DSK}:{S_DSK+1}], s{S_T4}''')
        a(f'''s_mov_b32 s{R_WS}, s{S_WS}
        s_and_b32 s{R_WS+1}, s{S_WS+1}, 0xffff
        s_mov_b32 s{R_WS+2}, {WS_SIZE}
        s_mov_b32 s{R_WS+3}, 0x20000
        s_mov_b32 s{R_W1}, s{S_W1}
        s_and_b32 s{R_W1+1}, s{S_W1+1}, 0xffff
        s_mov_b32 s{R_W1+2}, {448*1792*2}
        s_mov_b32 s{R_W1+3}, 0x20000
        s_mov_b32 s{R_W2}, s{S_W2}
        s_and_b32 s{R_W2+1}, s{S_W2+1}, 0xffff
        s_mov_b32 s{R_W2+2}, {448*1792*2}
        s_mov_b32 s{R_W2+3}, 0x20000''')
        sk = self.lab()
        a(f'''v_mov_b32 v36, 0
        v_mov_b32 v37, 0
        v_mov_b32 v38, 0
        v_mov_b32 v39, 0
        s_lshl_b32 s{S_T0}, s2, 6
        s_add_u32 s{S_T0}, s{S_T0}, {WS_ST2}
        s_min_u32 s{S_T1}, s2, {NSYNC*64-1}
        s_lshl_b32 s{S_T1}, s{S_T1}, 8
        s_add_u32 s{S_T1}, s{S_T1}, {WS_CNT}
        s_lshl_b32 s{S_T2}, s{S_W}, 4
        s_add_u32 s{S_T0}, s{S_T0}, s{S_T2}
        s_add_u32 s{S_T1}, s{S_T1}, s{S_T2}
        s_mov_b64 exec, 1''')
        a.vmem(f'buffer_store_dwordx4 v[36:39], v{V_T2}, s[{R_WS}:{R_WS+3}], s{S_T0} offen sc1')
        a.vmem(f'buffer_store_dwordx4 v[36:39], v{V_T2}, s[{R_WS}:{R_WS+3}], s{S_T1} offen sc1')
        a('s_mov_b64 exec, -1')
        a(f'''s_cmp_ge_u32 s{S_J}, 14
        s_cselect_b32 s{S_T0}, 1, 0
        s_cselect_b32 s{S_T1}, 14, 0
        s_lshl_b32 s{S_SUB}, s{S_G}, 1
        s_add_u32 s{S_SUB}, s{S_SUB}, s{S_T0}
        s_sub_u32 s{S_NB}, s{S_J}, s{S_T1}
        s_cmp_ge_u32 s{S_NB}, 7
        s_cselect_b32 s{S_PI}, 1, 0
        s_cselect_b32 s{S_T1}, 7, 0
        s_sub_u32 s{S_CB}, s{S_NB}, s{S_T1}
        s_lshl_b32 s{S_TE}, s{S_SUB}, 1
        s_add_u32 s{S_TE}, s{S_TE}, s{S_PI}
        s_add_u32 s{S_TL}, s{S_TE}, 32
        s_mov_b32 s{S_XIN}, {WS_XT0}
        s_mov_b32 s{S_STIN}, {WS_ST0}
        s_mov_b32 s{S_XOUT}, {WS_X1}
        s_mov_b32 s{S_HB}, {WS_H0}
        s_lshl_b32 s{S_HF}, s{S_SUB}, 9
        s_add_u32 s{S_HF}, s{S_HF}, {WS_HFLG}
        s_mov_b32 s{S_CNT}, {WS_CNT}
        s_mov_b32 s{S_K1}, {fx(1/448)}
        s_mov_b32 s{S_K1+1}, {fx(1/448)}
        s_mov_b32 s{S_K2}, 0
        s_mov_b32 s{S_K2+1}, {fx(1e-5)}''')
        a(f'''v_lshrrev_b32 v40, 5, v{V_LANE}
        v_lshlrev_b32 v{V_TR}, 8, v40
        v_bfe_u32 v41, v{V_LANE}, 2, 2
        v_lshl_or_b32 v{V_TR}, v41, 6, v{V_TR}
        v_bfe_u32 v42, v{V_LANE}, 4, 1
        v_lshl_or_b32 v{V_TR}, v42, 5, v{V_TR}
        v_and_b32 v43, 3, v{V_LANE}
        v_lshl_or_b32 v{V_TR}, v43, 3, v{V_TR}''')
        a(f'''s_lshr_b32 s{S_T0}, s{S_W}, 1
        s_and_b32 s{S_T1}, s{S_W}, 1
        s_lshl_b32 s{S_T1}, s{S_T1}, 8
        s_mul_i32 s{S_T2}, s{S_T0}, {4*KCS}
        s_add_u32 s{S_T2}, s{S_T2}, {L_KC+328+3*KCS}
        s_sub_u32 s{S_T2}, s{S_T2}, s{S_T1}
        v_lshrrev_b32 v44, 4, v{V_LANE}
        v_lshlrev_b32 v45, 4, v44
        v_mul_u32_u24 v46, {KCS}, v43
        v_lshl_add_u32 v46, v41, 3, v46
        v_add_u32 v46, v45, v46
        v_sub_u32 v{V_CA}, s{S_T2}, v46
        s_mul_i32 s{S_T2}, s{S_T0}, {UIS}
        s_add_u32 s{S_T2}, s{S_T2}, {L_UI+528-192}
        s_sub_u32 s{S_T2}, s{S_T2}, s{S_T1}
        v_and_b32 v47, 15, v{V_LANE}
        v_lshl_add_u32 v{V_CB}, v47, 5, s{S_T2}
        v_sub_u32 v{V_CB}, v{V_CB}, v45
        s_mul_i32 s{S_T2}, s{S_W}, {PWS}
        v_mul_u32_u24 v{V_PW}, {PH}, v44
        v_lshl_add_u32 v{V_PW}, v47, 4, v{V_PW}
        v_add_u32 v{V_PW}, s{S_T2}, v{V_PW}
        v_and_b32 v46, 1, v0
        v_mul_u32_u24 v{V_PR}, {2*PH}, v46
        v_lshrrev_b32 v46, 1, v0
        v_lshl_add_u32 v{V_PR}, v46, 4, v{V_PR}
        s_lshl_b32 s{S_T2}, s{S_P}, 5
        v_mul_u32_u24 v{V_XIN}, 7168, v0
        v_add_u32 v{V_XIN}, s{S_T2}, v{V_XIN}
        s_lshl_b32 s{S_T2}, s{S_P}, 7
        v_lshrrev_b32 v46, 2, v0
        v_mul_u32_u24 v{V_XOUT}, {SLOT}, v46
        v_lshl_add_u32 v{V_XOUT}, v43, 4, v{V_XOUT}
        v_add_u32 v{V_XOUT}, s{S_T2}, v{V_XOUT}
        v_lshlrev_b32 v{V_ST}, 6, v0
        v_lshl_add_u32 v{V_UW}, v0, 4, 0
        v_add_u32 v{V_UW}, {L_UI+512}, v{V_UW}''')
        a(f'''v_mul_u32_u24 v46, {UIS}, v40
        v_lshl_add_u32 v46, v17, 4, v46
        v_add_u32 v46, {L_UI}, v46''')
        a('s_waitcnt lgkmcnt(0)')
        a.lds(f'ds_write_b128 v46, v[36:39]')
        a(f'''s_lshl_b32 s{S_DK}, s{S_T6}, 16
        s_and_b32 s{S_DK+1}, s{S_T6}, 0xffff0000''')
        a(f'''s_mul_i32 s{S_T0}, s{S_W}, 1920
        s_add_u32 s{S_T0}, s{S_T0}, {L_TB}
        v_mul_u32_u24 v46, 960, v16
        v_lshl_add_u32 v46, v17, 4, v46
        v_add_u32 v46, s{S_T0}, v46
        s_lshl_b32 s{S_T0}, s{S_W}, 7
        s_add_u32 s{S_T0}, s{S_T0}, {L_TB}
        v_mul_u32_u24 v47, 960, v41
        v_lshl_add_u32 v47, v44, 5, v47
        v_lshl_add_u32 v47, v43, 3, v47
        v_add_u32 v47, s{S_T0}, v47
        v_mov_b32 v48, 0
        v_mov_b32 v49, 0
        s_mov_b32 s{S_T7}, 0x3f803f80''')
        a.wait(vm=t_rows)
        a(f'''s_mov_b32 exec_lo, 0x0fffffff
        s_mov_b32 exec_hi, 0x0fffffff''')
        a.lds('ds_write_b128 v46, v[20:23]')
        a.lds('ds_write_b128 v46, v[24:27] offset:448')
        a('s_mov_b64 exec, -1')
        for r in range(20, 28):
            a(f'v_dot2c_f32_bf16 v48, s{S_T7}, v{r}\nv_dot2c_f32_bf16 v49, v{r}, v{r}')
        a.wait_all(vm=False)
        a('s_barrier')
        a.lds('ds_read_b64_tr_b16 v[20:21], v47')
        a.lds('ds_read_b64_tr_b16 v[22:23], v47 offset:3840')
        a.lds('ds_read_b64_tr_b16 v[24:25], v47 offset:512')
        a.lds('ds_read_b64_tr_b16 v[26:27], v47 offset:4352')
        for m in ('quad_perm:[1,0,3,2]', 'quad_perm:[2,3,0,1]', 'row_half_mirror', 'row_mirror'):
            a(f'v_add_f32_dpp v48, v48, v48 {m} row_mask:0xf bank_mask:0xf\nv_add_f32_dpp v49, v49, v49 {m} row_mask:0xf bank_mask:0xf')
        a('''v_add_f32_dpp v48, v48, v48 row_bcast:15 row_mask:0xa bank_mask:0xf
        v_add_f32_dpp v49, v49, v49 row_bcast:15 row_mask:0xa bank_mask:0xf''')
        a(f'''s_lshl_b32 s{S_T0}, s2, 2
        s_add_u32 s{S_T0}, s{S_T0}, s{S_W}
        s_lshl_b32 s{S_T0}, s{S_T0}, 4
        s_add_u32 s{S_T0}, s{S_T0}, {WS_ST0}
        v_lshlrev_b32 v46, 3, v16
        s_mov_b32 exec_lo, 0x10000
        s_mov_b32 exec_hi, 0x10000''')
        a.vmem(f'buffer_store_dwordx2 v[48:49], v46, s[{R_WS}:{R_WS+3}], s{S_T0} offen sc1')
        a(f'''s_mov_b64 exec, -1
        s_mul_i32 s{S_T0}, s2, 7168
        s_lshl_b32 s{S_T1}, s{S_W}, 10
        s_add_u32 s{S_T0}, s{S_T0}, s{S_T1}
        s_add_u32 s{S_T0}, s{S_T0}, {WS_XT0}
        s_add_u32 s{S_T1}, s{S_T0}, 4096''')
        a.wait_all(vm=False)
        a.vmem(f'buffer_store_dwordx4 v[20:23], v{V_L16}, s[{R_WS}:{R_WS+3}], s{S_T0} offen sc1')
        sk = self.lab()
        a(f's_cmp_eq_u32 s{S_W}, 3\ns_cbranch_scc1 {sk}')
        a(f'buffer_store_dwordx4 v[24:27], v{V_L16}, s[{R_WS}:{R_WS+3}], s{S_T1} offen sc1')
        a(f'{sk}:')
        a('s_waitcnt vmcnt(4)')
        a.vm_done = self.t_par
        a(f'''v_readfirstlane_b32 s{S_TAG}, v28
        s_add_u32 s{S_TAG}, s{S_TAG}, 16
        s_and_b32 s{S_TAG}, s{S_TAG}, 0xfffffff0''')

    def flag0(self):
        a = self.a
        a('s_waitcnt vmcnt(0)'); a.vm_done = a.vm
        a('s_barrier')
        sk = self.lab()
        a(f'''s_cmp_lg_u32 s{S_W}, 0
        s_cbranch_scc1 {sk}
        s_getreg_b32 s{S_T0}, hwreg(HW_REG_XCC_ID, 0, 4)
        s_or_b32 s{S_T0}, s{S_T0}, s{S_TAG}
        s_lshl_b32 s{S_T1}, s2, 2
        s_add_u32 s{S_T1}, s{S_T1}, {WS_FLG0}
        v_mov_b32 v{V_T0}, s{S_T0}
        v_mov_b32 v{V_T1}, 0
        s_mov_b64 exec, 1
        buffer_store_dword v{V_T0}, v{V_T1}, s[{R_WS}:{R_WS+3}], s{S_T1} offen sc1
        s_mov_b64 exec, -1
        {sk}:''')

    def wait_flag0(self):
        a = self.a
        lp = self.lab(); dn = self.lab()
        a(f'''s_and_b32 s{S_T1}, s{S_SUB}, 1
        s_mul_i32 s{S_T1}, s{S_T1}, 112
        s_add_u32 s{S_T1}, s{S_T1}, s{S_G}
        s_lshl_b32 s{S_T1}, s{S_T1}, 2
        s_add_u32 s{S_T1}, s{S_T1}, {WS_FLG0+128}
        v_min_u32 v{V_T0}, 13, v{V_LANE}
        v_lshlrev_b32 v{V_T0}, 5, v{V_T0}
        s_mov_b32 s{S_T0}, {WS_FLG0}
        {lp}:
        buffer_load_dwordx4 v[16:19], v{V_L16}, s[{R_WS}:{R_WS+3}], s{S_T0} offen sc1
        buffer_load_dword v21, v{V_T0}, s[{R_WS}:{R_WS+3}], s{S_T1} offen sc1
        s_waitcnt vmcnt(0)
        v_xor_b32 v16, s{S_TAG}, v16
        v_xor_b32 v17, s{S_TAG}, v17
        v_xor_b32 v18, s{S_TAG}, v18
        v_xor_b32 v19, s{S_TAG}, v19
        v_xor_b32 v20, s{S_TAG}, v21
        v_or3_b32 v16, v16, v17, v18
        v_or3_b32 v16, v16, v19, v20
        v_cmp_lt_u32 vcc, 15, v16''')
        self.spin_tail(lp, dn)
        a.vm_done = a.vm
        a(f'''v_readfirstlane_b32 s{S_T0}, v21
        v_cmp_ne_u32 vcc, s{S_T0}, v21
        s_cmp_eq_u64 vcc, 0
        s_cselect_b32 s{S_LOCAL}, 1, 0''')
        sk = self.lab()
        a(f'''s_lshl_b32 s{S_T0}, s2, 2
        s_add_u32 s{S_T0}, s{S_T0}, s{S_W}
        s_cmp_lg_u32 s{S_T0}, 128
        s_cbranch_scc1 {sk}
        v_mov_b32 v{V_T0}, s{S_TAG}
        v_mov_b32 v{V_T1}, 0
        s_mov_b64 exec, 1
        buffer_store_dword v{V_T0}, v{V_T1}, s[{R_WS}:{R_WS+3}], 0 offen sc1
        s_mov_b64 exec, -1
        s_waitcnt vmcnt(0)
        {sk}:''')

    def kgen(self):
        a = self.a
        P = lambda r: f'v[{r}:{r+1}]'
        LOG2E = 1.4426950408889634
        l_hi = struct.unpack('<f', struct.pack('<f', LOG2E))[0]
        l_lo = LOG2E - l_hi
        a(f'''s_lshl_b32 s{S_T0}, s{S_T5}, 16
        s_and_b32 s{S_T1}, s{S_T5}, 0xffff0000
        s_cmp_ge_u32 s{S_W}, 2
        s_cselect_b32 s{S_T0}, s{S_T1}, s{S_T0}
        v_mov_b32 v40, s{S_T0}
        v_mov_b32 v41, {fx(l_hi)}
        v_mul_f32 v42, v40, v41
        v_fma_f32 v43, v40, v41, -v42
        v_fmamk_f32 v43, v40, {fx(l_lo)}, v43
        v_exp_f32 v42, v42
        v_mul_f32 v43, {fx(0.6931471805599453)}, v43
        v_fma_f32 v42, v42, v43, v42
        v_cvt_pk_bf16_f32 v42, v42, v42
        v_lshlrev_b32 v42, 16, v42
        v_mov_b32 v43, v42''')
        DT = 42
        names = ['are', 'aim', 'bre', 'bim', 'cre', 'cim']
        R = {n: 44 + 2*i for i, n in enumerate(names)}
        for i, n in enumerate(names):
            a(f'v_lshlrev_b32 v{R[n]}, 16, v{30+i}\nv_and_b32 v{R[n]+1}, 0xffff0000, v{30+i}')
        SIG, TH = R['are'], R['aim']
        a(f'''v_pk_mul_f32 {P(SIG)}, {P(SIG)}, {P(DT)}
        v_pk_mul_f32 {P(TH)}, {P(TH)}, {P(DT)}
        v_mul_f32 v{SIG}, v41, v{SIG}
        v_mul_f32 v{SIG+1}, v41, v{SIG+1}
        v_mul_f32 v{TH}, 0.15915494, v{TH}
        v_mul_f32 v{TH+1}, 0.15915494, v{TH+1}''')
        TA, TB = 56, 58
        def cmul(o, x, y):
            a(f'''v_pk_mul_f32 {P(TA)}, {P(x+2)}, {P(y+2)}
            v_pk_mul_f32 {P(TB)}, {P(x+2)}, {P(y)}
            v_pk_fma_f32 {P(o+2)}, {P(x)}, {P(y+2)}, {P(TB)}
            v_pk_fma_f32 {P(o)}, {P(x)}, {P(y)}, {P(TA)} neg_lo:[0,0,1] neg_hi:[0,0,1]''')
        def direct(o, p):
            if p == 1:
                e, f = SIG, TH
            else:
                e, f = TA, TB
                for k in range(2):
                    a(f'v_mul_f32 v{TA+k}, {fx(float(p))}, v{SIG+k}\nv_mul_f32 v{TB+k}, {fx(float(p))}, v{TH+k}')
            a(f'''v_fract_f32 v{TB}, v{f}
            v_fract_f32 v{TB+1}, v{f+1}
            v_exp_f32 v{TA}, v{e}
            v_exp_f32 v{TA+1}, v{e+1}
            v_cos_f32 v{o}, v{TB}
            v_cos_f32 v{o+1}, v{TB+1}
            v_sin_f32 v{o+2}, v{TB}
            v_sin_f32 v{o+3}, v{TB+1}
            v_pk_mul_f32 {P(o)}, {P(o)}, {P(TA)}
            v_pk_mul_f32 {P(o+2)}, {P(o+2)}, {P(TA)}''')
        VW, VF = 16, 17
        a(f'''s_mul_i32 s{S_T0}, s{S_W}, {IMG}
        v_lshl_add_u32 v{VW}, v{V_LANE}, 3, s{S_T0}
        v_and_b32 v18, 31, v{V_LANE}
        v_lshrrev_b32 v19, 5, v{V_LANE}
        v_mul_u32_u24 v{VF}, 528, v18
        v_lshl_add_u32 v{VF}, v19, 4, v{VF}
        v_add_u32 v{VF}, s{S_T0}, v{VF}''')
        wr = [0]
        def emit(row, z, neg):
            t = 20 + 2 * (wr[0] % 4); wr[0] += 1
            s = '-' if neg else ''
            a(f'v_cvt_pk_bf16_f32 v{t}, v{z}, v{z+1}\nv_cvt_pk_bf16_f32 v{t+1}, {s}v{z+2}, {s}v{z+3}')
            a.lds(f'ds_write_b64 v{VW}, {P(t)} offset:{row*528}')
        from emu import YP0, YP1
        yrow = {}
        for rho, p in enumerate(YP0): yrow[p] = 8 * (rho >> 2) + (rho & 3)
        for rho, p in enumerate(YP1): yrow[p] = 8 * (rho >> 2) + 4 + (rho & 3)
        Z1, Z2, Z4, Z6, Z8, WW, WK, ZT, X = 60, 64, 68, 72, 76, 80, 84, 88, 92
        a(f'v_mov_b32 v20, 0x3f803f80\nv_mov_b32 v21, 0'); wr[0] = 1
        a.lds(f'ds_write_b64 v{VW}, v[20:21] offset:{yrow[0]*528}')
        direct(Z1, 1); emit(yrow[1], Z1, True)
        direct(Z8, 8); direct(WW, 256)
        cmul(Z2, Z1, Z1); emit(yrow[2], Z2, True)
        cmul(ZT, Z2, Z1); emit(yrow[3], ZT, True)
        cmul(Z4, Z2, Z2); emit(yrow[4], Z4, True)
        cmul(ZT, Z4, Z1); emit(yrow[5], ZT, True)
        cmul(Z6, Z4, Z2); emit(yrow[6], Z6, True)
        cmul(ZT, Z6, Z1); emit(yrow[7], ZT, True)
        emit(yrow[256], WW, True)
        for o, z in ((2, Z2), (4, Z4), (6, Z6), (8, Z8)):
            cmul(ZT, WW, z); emit(yrow[256+o], ZT, True)
        for k in range(2, 8):
            cmul(WK, WW if k == 2 else WK, WW); emit(yrow[256*k], WK, True)
            if k < 4:
                cmul(ZT, WK, Z4); emit(yrow[256*k+4], ZT, True)
            cmul(ZT, WK, Z8); emit(yrow[256*k+8], ZT, True)
        self.flag0()
        cmul(X, R['cre'], R['bre'])
        a(f'v_pk_mul_f32 {P(X)}, {P(X)}, {P(DT)}\nv_pk_mul_f32 {P(X+2)}, {P(X+2)}, {P(DT)}')
        YF = 144; XF = 208
        for i in range(32):
            emit(28 + i, X, False)
            if 4 <= i < 20:
                s = i - 4
                a.lds(f'ds_read_b128 v[{YF+4*s}:{YF+4*s+3}], v{VF} offset:{32*s}')
            if i < 31: cmul(X, X, Z8)
        tk = {}
        NXB = 12
        def xread(s):
            r = XF + 4 * (s % NXB)
            tk[s] = a.lds(f'ds_read_b128 v[{r}:{r+3}], v{VF} offset:{28*528+32*s}')
        for s in range(NXB): xread(s)
        D = 24
        for s in range(16):
            a.wait(lg=tk[s])
            r = XF + 4 * (s % NXB)
            a(f'v_mfma_f32_32x32x16_bf16 v[{D}:{D+15}], v[{YF+4*s}:{YF+4*s+3}], v[{r}:{r+3}], ' + ('0' if s == 0 else f'v[{D}:{D+15}]'))
            if s + NXB < 16: xread(s + NXB)
        a(f'''s_and_b32 s{S_T1}, s{S_W}, 1
        s_mul_i32 s{S_T0}, s{S_W}, {IMG}
        v_lshl_add_u32 v40, v18, 4, s{S_T0}
        s_xor_b32 s{S_T2}, s{S_W}, 1
        s_mul_i32 s{S_T2}, s{S_T2}, {IMG}
        v_lshl_add_u32 v41, v18, 4, s{S_T2}
        s_lshr_b32 s{S_T3}, s{S_W}, 1
        s_mul_i32 s{S_T3}, s{S_T3}, {4*KCS}
        s_add_u32 s{S_T3}, s{S_T3}, {L_KC+496}
        v_lshlrev_b32 v42, 4, v18
        v_sub_u32 v42, s{S_T3}, v42
        v_and_b32 v43, 1, v{V_LANE}
        v_cmp_eq_u32 vcc, 1, v43
        s_cmp_eq_u32 s{S_T1}, 0
        s_cselect_b32 s{S_T4}, -1, 0
        s_cselect_b32 s{S_T5}, 0, -1
        s_mov_b32 exec_lo, s{S_T5}
        s_mov_b32 exec_hi, s{S_T4}''')
        for q in range(4):
            a.lds(f'ds_write_b128 v40, v[{D+4*q}:{D+4*q+3}] offset:{512*q}')
        a(f's_mov_b32 exec_lo, s{S_T4}\ns_mov_b32 exec_hi, s{S_T5}')
        a.wait_all(vm=False)
        a('s_barrier')
        for q in range(4):
            a.lds(f'ds_read_b128 v[{44+4*q}:{47+4*q}], v41 offset:{512*q}')
        a(f'''v_lshrrev_b32 v60, 2, v18
        v_mul_u32_u24 v60, {KCS}, v60
        v_and_b32 v61, 3, v18
        v_lshl_add_u32 v60, v61, 4, v60
        v_add_u32 v60, {L_KC+4096}, v60
        v_mov_b32 v64, 0
        v_mov_b32 v65, 0
        v_mov_b32 v66, 0
        v_mov_b32 v67, 0''')
        t = a.lg
        a.lds('ds_write_b128 v60, v[64:67]')
        a.wait(lg=t)
        for q in range(8):
            a(f'v_pk_add_f32 {P(D+2*q)}, {P(D+2*q)}, {P(44+2*q)}')
        ch = [0]
        def chunk(blk, pairs):
            t = 44 + 4 * ch[0]; ch[0] += 1
            for k, (lo, hi) in enumerate(pairs):
                a(f'v_cvt_pk_bf16_f32 v{t+k}, v{lo}, v{hi}')
            a(f'ds_write_b128 v42, v[{t}:{t+3}] offset:{3584-512*blk}')
        l1 = self.lab(); l2 = self.lab()
        a(f's_cmp_eq_u32 s{S_T1}, 0\ns_cbranch_scc0 {l1}')
        chunk(0, [(D+7, D+6), (D+5, D+4), (D+3, D+2), (D+1, D+0)])
        chunk(1, [(D+12, D+11), (D+10, D+10), (D+10, D+9), (D+8, D+8)])
        chunk(2, [(D+15, D+15), (D+14, D+14), (D+14, D+13), (D+13, D+13)])
        a(f's_branch {l2}\n{l1}:')
        ch[0] = 0
        chunk(3, [(D+2, D+2), (D+1, D+1), (D+1, D+0), (D+0, D+0)])
        for k in range(4):
            p0, p8 = D + 3 + 2*k, D + 4 + 2*k
            a(f'v_cndmask_b32 v43, v{p0}, v{p8}, vcc')
            chunk(4 + k, [(p8, p8), (p8, 43), (p0, p0), (p0, p0)])
        a(f'{l2}:\ns_mov_b64 exec, -1')
        a.wait_all(vm=False, force=True)
        a('s_barrier')
        a(f'v_lshlrev_b32 v40, 4, v0\nv_add_u32 v40, {L_KC}, v40')
        for c in range(2):
            b = 44 + 24 * c
            a.lds(f'ds_read_b128 v[{b}:{b+3}], v40 offset:{c*4*KCS}')
            tk[c] = a.lds(f'ds_read_b64 v[{b+4}:{b+5}], v40 offset:{c*4*KCS+16}')
        for c in range(2):
            b = 44 + 24 * c
            a.wait(lg=tk[c])
            for k in range(4): a(f'v_alignbit_b32 v{b+8+k}, v{b+k+1}, v{b+k}, 16')
            a.lds(f'ds_write_b128 v40, v[{b+8}:{b+11}] offset:{(c*4+1)*KCS}')
            a(f'v_pk_mov_b32 {P(b+12)}, {P(b)}, {P(b+2)} op_sel:[1,0]\nv_pk_mov_b32 {P(b+14)}, {P(b+2)}, {P(b+4)} op_sel:[1,0]')
            a.lds(f'ds_write_b128 v40, v[{b+12}:{b+15}] offset:{(c*4+2)*KCS}')
            for k in range(4): a(f'v_alignbit_b32 v{b+16+k}, v{b+k+2}, v{b+k+1}, 16')
            a.lds(f'ds_write_b128 v40, v[{b+16}:{b+19}] offset:{(c*4+3)*KCS}')

    def conv(self):
        a = self.a
        P = lambda r: f'v[{r}:{r+1}]'
        BASE = 16
        XA = 32
        ST = 40
        for k in range(4):
            t_st = a.vmem(f'buffer_load_dwordx4 v[{ST+4*k}:{ST+4*k+3}], v{V_ST}, s[{R_WS}:{R_WS+3}], s{S_STIN} offen offset:{16*k} sc1')
        a.vmem(f'buffer_load_dwordx4 v[{XA}:{XA+3}], v{V_XIN}, s[{R_WS}:{R_WS+3}], s{S_XIN} offen sc1')
        t_x = a.vmem(f'buffer_load_dwordx4 v[{XA+4}:{XA+7}], v{V_XIN}, s[{R_WS}:{R_WS+3}], s{S_XIN} offen offset:16 sc1')
        RS, CC, U = 56, 64, 72
        a(f'v_mov_b32 v96, s{S_K2}\nv_mov_b32 v97, s{S_K2+1}')
        a.wait(vm=t_st)
        for i in range(8): a(f'v_pk_fma_f32 {P(ST+2*i)}, {P(ST+2*i)}, s[{S_K1}:{S_K1+1}], v[96:97]')
        for i in range(8): a(f'v_fma_f32 v{RS+i}, -v{ST+2*i}, v{ST+2*i}, v{ST+2*i+1}')
        for i in range(8): a(f'v_max_f32 v{RS+i}, v97, v{RS+i}')
        for i in range(8): a(f'v_rsq_f32 v{RS+i}, v{RS+i}')
        for i in range(8): a(f'v_mul_f32_e64 v{CC+i}, -v{ST+2*i}, v{RS+i}')
        a.wait(vm=t_x)
        for i in range(8):
            a(f'v_lshlrev_b32 v{BASE+2*i}, 16, v{XA+i}\nv_and_b32 v{BASE+2*i+1}, 0xffff0000, v{XA+i}')
        for c in range(2):
            for i in range(4):
                a(f'v_pk_fma_f32 {P(U+8*c+2*i)}, {P(BASE+8*c+2*i)}, {P(RS+2*i)}, {P(CC+2*i)}')
            for i in range(4):
                a(f'v_cvt_pk_bf16_f32 v{88+4*c+i}, v{U+8*c+2*i}, v{U+8*c+2*i+1}')
            a.lds(f'ds_write_b128 v{V_UW}, v[{88+4*c}:{91+4*c}] offset:{c*UIS}')
        for c in range(2):
            sel = 'op_sel_hi:[1,0,1]' if c == 0 else 'op_sel:[0,1,0]'
            for i in range(4):
                a(f'v_pk_fma_f32 {P(BASE+8*c+2*i)}, {P(U+8*c+2*i)}, s[{S_DK}:{S_DK+1}], {P(BASE+8*c+2*i)} {sel}')
        a.wait_all(vm=False)
        a('s_barrier')
        self.ts(1, True)
        seq = []
        for ii in range(4):
            if ii == 0 or ii == 2:
                s = [(q, p) for p in range(7, -1, -1) for q in range(8 - p)]
            elif ii == 1:
                s = [(q, p) for q in range(8) for p in range(8 - q)]
            else:
                s = [(q, cb - q) for cb in range(8) for q in range(cb + 1)]
            seq += [(ii, q, p) for q, p in s]
        first = {}; last = {}
        for n, (ii, q, p) in enumerate(seq):
            for key in (('A', ii, q), ('B', ii, p)):
                first.setdefault(key, n); last[key] = n
        order = sorted(first, key=lambda k: first[k])
        pool = [32 + 4 * i for i in range(27)]
        reg = {}; tok = {}; nxt = [0]
        ACC = 224
        def issue(n, maxn):
            cnt = 0
            while nxt[0] < len(order) and pool and cnt < maxn:
                key = order[nxt[0]]
                if first[key] > n + 40: break
                if a.lg - a.lg_done > 12: break
                r = pool.pop(0); reg[key] = r
                kind, ii, x = key
                if kind == 'A':
                    off = 64 * (3 - ii) + 512 * (7 - x)
                    a.lds(f'ds_read_b64 v[{r}:{r+1}], v{V_CA} offset:{off}')
                    tok[key] = a.lds(f'ds_read_b64 v[{r+2}:{r+3}], v{V_CA} offset:{off+8}')
                    cnt += 2
                else:
                    tok[key] = a.lds(f'ds_read_b128 v[{r}:{r+3}], v{V_CB} offset:{64*(3-ii)+512*x}')
                    cnt += 1
                nxt[0] += 1
        issue(0, 12)
        started = set(); pend = []
        for n, (ii, q, p) in enumerate(seq):
            ka, kb = ('A', ii, q), ('B', ii, p)
            while ka not in tok or kb not in tok:
                a.wait(lg=a.lg - 8); issue(n, 3)
            a.wait(lg=max(tok[ka], tok[kb]))
            cb = q + p
            acc = f'a[{ACC+4*cb}:{ACC+4*cb+3}]'
            a(f'v_mfma_f32_16x16x32_bf16 {acc}, v[{reg[ka]}:{reg[ka]+3}], v[{reg[kb]}:{reg[kb]+3}], ' + (acc if cb in started else '0'))
            started.add(cb)
            for key in (ka, kb):
                if last[key] == n: pool.append(reg[key])
            if ii == 3 and p == 0: pend.append((n, cb))
            if pend and n - pend[0][0] >= 5:
                _, c2 = pend.pop(0)
                a.lds(f'ds_write_b128 v{V_PW}, a[{ACC+4*c2}:{ACC+4*c2+3}] offset:{256*c2}')
            else:
                issue(n, 1)
        for _, c2 in pend:
            a.lds(f'ds_write_b128 v{V_PW}, a[{ACC+4*c2}:{ACC+4*c2+3}] offset:{256*c2}')
        a.wait_all(vm=False)
        a('s_barrier')
        self.ts(2, True)
        tk = {}
        for c in range(2):
            for v in range(2):
                for hh in range(2):
                    r = 32 + 16 * c + 8 * v + 4 * hh
                    tk[c, v] = a.lds(f'ds_read_b128 v[{r}:{r+3}], v{V_PR} offset:{(2*c+v)*PWS + hh*PH}')
        for c in range(2):
            for v in range(2):
                a.wait(lg=tk[c, v])
                for i in range(4):
                    a(f'v_pk_add_f32 {P(BASE+8*c+2*i)}, {P(BASE+8*c+2*i)}, {P(32+16*c+8*v+2*i)}')
            for i in range(4):
                a(f'v_cvt_pk_bf16_f32 v{64+4*c+i}, v{BASE+8*c+2*i}, v{BASE+8*c+2*i+1}')
            a.vmem(f'buffer_store_dwordx4 v[{64+4*c}:{67+4*c}], v{V_XOUT}, s[{R_WS}:{R_WS+3}], s{S_XOUT} offen offset:{64*c} sc1')

    def weights(self):
        a = self.a
        P = lambda r: f'v[{r}:{r+1}]'
        VA, VR = 16, 17
        a(f'''s_mul_i32 s{S_T4}, s{S_W}, {SLOT}
        v_add_u32 v{VR}, s{S_T4}, v{V_TR}
        v_lshrrev_b32 v18, 2, v{V_LANE}
        v_and_b32 v19, 3, v{V_LANE}
        v_mul_u32_u24 v{VA}, 3584, v18
        v_lshl_add_u32 v{VA}, v19, 4, v{VA}
        s_lshl_b32 s{S_T0}, s{S_NB}, 2
        s_add_u32 s{S_T0}, s{S_T0}, s{S_W}
        s_lshl_b32 s{S_T0}, s{S_T0}, 6''')
        def batch(srd, steps, dests):
            for i in range(28):
                a(f's_add_u32 m0, s{S_T4}, {1024*i}')
                a.vmem(f'buffer_load_dwordx4 v{VA}, s[{srd}:{srd+3}], s{S_T0} offen lds')
                a(steps(i))
            base = a.vm - 28
            for i in range(28):
                if i % 4 == 0: a.wait(vm=base + min(i + 4, 28))
                k, r = dests(i)
                a.lds(f'ds_read_b64_tr_b16 {k}[{r}:{r+1}], v{VR} offset:{1024*i}')
                a.lds(f'ds_read_b64_tr_b16 {k}[{r+2}:{r+3}], v{VR} offset:{1024*i+512}')
            a.wait_all(vm=False)
        batch(R_W1, lambda i: f's_add_u32 s{S_T0}, s{S_T0}, {16*3584}', lambda i: ('v', V_W1 + 4 * i))
        a(f'''s_lshl_b32 s{S_T1}, s{S_W}, 1
        s_and_b32 s{S_T2}, s{S_T1}, 2
        v_xor_b32 v19, s{S_T2}, v19
        v_mul_u32_u24 v{VA}, 896, v18
        v_lshl_add_u32 v{VA}, v19, 4, v{VA}
        s_mul_i32 s{S_T0}, s{S_W}, {448*896}
        s_lshl_b32 s{S_T1}, s{S_CB}, 7
        s_add_u32 s{S_T0}, s{S_T0}, s{S_T1}
        s_lshr_b32 s{S_T1}, s{S_W}, 1
        s_lshl_b32 s{S_T1}, s{S_T1}, 6
        s_add_u32 s{S_T0}, s{S_T0}, s{S_T1}''')
        for b in range(2):
            batch(R_W2, lambda i: (f's_xor_b32 s{S_T0}, s{S_T0}, 64' + ('' if i % 2 == 0 else f'\ns_add_u32 s{S_T0}, s{S_T0}, {16*896}')),
                  lambda i: ('a', 112 * b + 4 * i))
        a(f's_mov_b32 s{S_T7}, 0x3f803f80\nv_mov_b32 v20, 0\nv_mov_b32 v21, 0')
        for r in range(112): a(f'v_dot2c_f32_bf16 v{20+(r&1)}, s{S_T7}, v{V_W1+r}')
        a(f'''v_add_f32 v20, v20, v21
        v_mov_b32 v21, v20
        v_permlane32_swap_b32 v20, v21
        v_add_f32 v20, v20, v21
        v_mul_f32 v20, {fx(-1/448)}, v20''')
        for r in range(112):
            t = 22 + 2 * (r % 4)
            a(f'''v_lshlrev_b32 v{t}, 16, v{V_W1+r}
            v_and_b32 v{t+1}, 0xffff0000, v{V_W1+r}
            v_pk_add_f32 {P(t)}, {P(t)}, {P(20)} op_sel_hi:[1,0]
            v_cvt_pk_bf16_f32 v{V_W1+r}, v{t}, v{t+1}''')

    def hflag(self, half):
        a = self.a
        l1 = self.lab(); l2 = self.lab()
        a(f'''s_lshl_b32 s{S_T0}, s{S_NB}, 2
        s_add_u32 s{S_T0}, s{S_T0}, s{S_W}
        s_lshl_b32 s{S_T0}, s{S_T0}, 2
        s_add_u32 s{S_T0}, s{S_T0}, s{S_HF}
        v_mov_b32 v{V_T0}, s{S_TAG}
        s_cmp_eq_u32 s{S_LOCAL}, 1
        s_cbranch_scc1 {l1}
        buffer_wbl2 sc1
        s_waitcnt vmcnt(0)
        buffer_store_dword v{V_T0}, off, s[{R_WS}:{R_WS+3}], s{S_T0} offset:{256*half} sc1
        s_branch {l2}
        {l1}:''')
        a.vmem(f'buffer_store_dword v{V_T0}, off, s[{R_WS}:{R_WS+3}], s{S_T0} offset:{256*half}')
        a(f'{l2}:')
    def hwait(self, half):
        a = self.a
        lp = self.lab(); dn = self.lab(); sk = self.lab()
        a(f'''s_mul_i32 s{S_T0}, s{S_W}, 56
        s_add_u32 s{S_T0}, s{S_T0}, s{S_HF}
        v_min_u32 v{V_T1}, 13, v{V_LANE}
        v_lshlrev_b32 v{V_T1}, 2, v{V_T1}
        {lp}:
        buffer_load_dword v{V_T2}, v{V_T1}, s[{R_WS}:{R_WS+3}], s{S_T0} offen offset:{256*half} sc1
        s_waitcnt vmcnt(0)
        v_cmp_ne_u32 vcc, s{S_TAG}, v{V_T2}''')
        self.spin_tail(lp, dn)
        a(f'''s_cmp_eq_u32 s{S_LOCAL}, 1
        s_cbranch_scc1 {sk}
        buffer_inv sc1
        s_waitcnt vmcnt(0)
        {sk}:''')
        a.vm_done = a.vm

    def gemm1(self):
        a = self.a
        tl = [S_T4, S_T5, S_T6, S_T7]
        a(f'''s_mov_b32 s{S_T4}, s{S_TE}
        s_xor_b32 s{S_T5}, s{S_TE}, 1
        s_mov_b32 s{S_T6}, s{S_TL}
        s_xor_b32 s{S_T7}, s{S_TL}, 1
        s_mul_i32 s{S_T3}, s{S_W}, 7168''')
        tdma = []
        for s in range(4):
            a(f'''s_mul_i32 s{S_T0}, s{tl[s]}, {SLOT}
            s_add_u32 s{S_T0}, s{S_T0}, s{S_XOUT}
            s_add_u32 s{S_T0}, s{S_T0}, s{S_T3}
            s_add_u32 m0, s{S_T3}, {s*SLOT}''')
            for i in range(7):
                if i == 4:
                    a(f's_add_u32 s{S_T0}, s{S_T0}, 4096\ns_add_u32 m0, s{S_T3}, {s*SLOT+4096}')
                t = a.vmem(f'buffer_load_dwordx4 v{V_L16}, s[{R_WS}:{R_WS+3}], s{S_T0} offen offset:{1024*(i%4)} sc1 lds')
            tdma.append(t)
        a(f'''s_lshl_b32 s{S_T0}, s{S_NB}, 2
        s_add_u32 s{S_T0}, s{S_T0}, s{S_W}
        s_lshl_b32 s{S_T0}, s{S_T0}, 11
        s_add_u32 s{S_T0}, s{S_T0}, s{S_HB}''')
        for s in range(4):
            a(f's_mul_i32 s{tl[s]}, s{tl[s]}, 114688\ns_add_u32 s{tl[s]}, s{tl[s]}, s{S_T0}')
        a(f'v_add_u32 v{V_T3}, {2*SLOT}, v{V_TR}')
        ACC = [16, 32]; FR = 48; NF = 7; PK = 80
        tok = {}
        def rd(f):
            s, k = divmod(f, 28)
            r = FR + 4 * (f % NF)
            va = V_TR if s < 2 else V_T3
            off = (s & 1) * SLOT + 1024 * k
            a.lds(f'ds_read_b64_tr_b16 v[{r}:{r+1}], v{va} offset:{off}')
            tok[f] = a.lds(f'ds_read_b64_tr_b16 v[{r+2}:{r+3}], v{va} offset:{off+512}')
        def epi_ops(s):
            c = ACC[s & 1]; ops = []
            for hh in range(2):
                for i in range(4):
                    ops.append(('v', f'v_cvt_pk_bf16_f32 v{PK+4*hh+i}, v{c+8*hh+2*i}, v{c+8*hh+2*i+1}'))
                for i in range(4):
                    ops.append(('v', f'v_pk_max_i16 v{PK+4*hh+i}, v{PK+4*hh+i}, 0'))
                ops.append(('m', f'buffer_store_dwordx4 v[{PK+4*hh}:{PK+4*hh+3}], v{V_L16}, s[{R_WS}:{R_WS+3}], s{tl[s]} offen offset:{1024*hh}'))
            return ops
        PD = NF - 1
        a.wait(vm=tdma[0]); a('s_barrier')
        self.ts(4, True)
        for f in range(PD): rd(f)
        ops = []; tst = {}
        for f in range(112):
            s, k = divmod(f, 28)
            if k == 0 and s > 0: ops = epi_ops(s - 1)
            a.wait(lg=tok[f])
            c = ACC[s & 1]; r = FR + 4 * (f % NF)
            a(f'v_mfma_f32_32x32x16_bf16 v[{c}:{c+15}], v[{V_W1+4*k}:{V_W1+4*k+3}], v[{r}:{r+3}], ' + ('0' if k == 0 else f'v[{c}:{c+15}]'))
            if k == 28 - PD and s < 3:
                a.wait(vm=tdma[s + 1])
                a('s_barrier')
            if s == 3 and k == 8:
                a.wait(vm=tst[1]); self.hflag(0)
            if f + PD < 112: rd(f + PD)
            if k >= 3 and ops:
                kind, t = ops.pop(0)
                if kind == 'v': a(t)
                else: tst[s - 1] = a.vmem(t)
        for kind, t in epi_ops(3):
            if kind == 'v': a(t)
            else: tst[3] = a.vmem(t)
        a.wait_all()
        self.hflag(1)
        a('s_barrier')

    def gemm2(self):
        a = self.a
        P = lambda r: f'v[{r}:{r+1}]'
        ACC = 16
        ring = [('v', 80 + 4 * i) for i in range(10)] + [('a', 224 + 4 * i) for i in range(8)]
        NH = len(ring)
        SF = 120
        SA = 128
        RES = 132
        self.hwait(0)
        self.hwait(1)
        self.ts(5, True)
        a(f'''s_mul_i32 s{S_T3}, s{S_W}, {SLOT}
        s_add_u32 s{S_T3}, s{S_T3}, s{S_HB}
        s_mul_i32 s{S_T4}, s{S_TE}, 114688
        s_add_u32 s{S_T4}, s{S_T4}, s{S_T3}
        s_mul_i32 s{S_T5}, s{S_TL}, 114688
        s_add_u32 s{S_T5}, s{S_T5}, s{S_T3}''')
        tok = {}
        def ld(f):
            tt, k = divmod(f, 28)
            so = S_T4 + tt
            kind, r = ring[f % NH]
            tok[f] = a.vmem(f'buffer_load_dwordx4 {kind}[{r}:{r+3}], v{V_L16}, s[{R_WS}:{R_WS+3}], s{so} offen offset:{1024*(k%4)} sc1')
            if k % 4 == 3: a(f's_add_u32 s{so}, s{so}, 4096')
        for f in range(NH - 1): ld(f)
        a(f'''s_mul_i32 s{S_T0}, s{S_W}, 7168
        v_add_u32 v{V_T0}, s{S_T0}, v{V_TR}
        v_add_u32 v{V_T1}, {2*SLOT}, v{V_T0}
        s_lshl_b32 s{S_T0}, s{S_CB}, 2
        s_add_u32 s{S_T0}, s{S_T0}, s{S_W}
        s_lshl_b32 s{S_T0}, s{S_T0}, 10
        v_add_u32 v{V_T2}, s{S_T0}, v{V_TR}
        s_mov_b32 s{S_T7}, 0x3f803f80''')
        for i in range(4): a(f'v_mov_b32 v{SA+i}, 0')
        a.lds(f'ds_read_b64_tr_b16 v[{RES}:{RES+1}], v{V_T2}')
        a.lds(f'ds_read_b64_tr_b16 v[{RES+2}:{RES+3}], v{V_T2} offset:512')
        a.lds(f'ds_read_b64_tr_b16 v[{RES+4}:{RES+5}], v{V_T2} offset:{2*SLOT}')
        a.lds(f'ds_read_b64_tr_b16 v[{RES+6}:{RES+7}], v{V_T2} offset:{2*SLOT+512}')
        sh = []
        stok = {}
        def srd(n):
            tt, k = divmod(n, 7); r = SF + 4 * (n & 1); va = V_T0 + tt
            a.lds(f'ds_read_b64_tr_b16 v[{r}:{r+1}], v{va} offset:{1024*k}')
            stok[n] = a.lds(f'ds_read_b64_tr_b16 v[{r+2}:{r+3}], v{va} offset:{1024*k+512}')
        srd(0); srd(1)
        for n in range(14):
            tt = n // 7; r = SF + 4 * (n & 1)
            for i in range(4):
                def op(n=n, i=i, tt=tt, r=r):
                    if i == 0: a.wait(lg=stok[n])
                    a(f'v_dot2c_f32_bf16 v{SA+2*tt}, s{S_T7}, v{r+i}\nv_dot2c_f32_bf16 v{SA+2*tt+1}, v{r+i}, v{r+i}')
                    if i == 3 and n + 2 < 14: srd(n + 2)
                sh.append(op)
        def fin():
            a(f'''v_permlane32_swap_b32 v{SA}, v{SA+1}
            v_permlane32_swap_b32 v{SA+2}, v{SA+3}
            v_and_b32 v{V_T0}, 31, v{V_LANE}
            v_lshlrev_b32 v{V_T0}, 5, v{V_T0}
            v_add_u32 v{V_T0}, {L_MISC}, v{V_T0}
            v_lshrrev_b32 v{V_T1}, 5, v{V_LANE}
            v_lshl_add_u32 v{V_T1}, v{V_T1}, 2, v{V_T0}
            s_lshl_b32 s{S_T0}, s{S_W}, 3
            v_add_u32 v{V_T1}, s{S_T0}, v{V_T1}
            v_add_f32 v{SA}, v{SA}, v{SA+1}
            v_add_f32 v{SA+2}, v{SA+2}, v{SA+3}''')
            a.lds(f'ds_write_b32 v{V_T1}, v{SA}')
            a.lds(f'ds_write_b32 v{V_T1}, v{SA+2} offset:1024')
        sh.append(fin)
        for f in range(56):
            tt, k = divmod(f, 28)
            a.wait(vm=tok[f])
            kind, r = ring[f % NH]
            for dt in range(2):
                c = ACC + 32 * tt + 16 * dt
                w = 8 * k + 4 * dt
                a(f'v_mfma_f32_32x32x16_bf16 v[{c}:{c+15}], a[{w}:{w+3}], {kind}[{r}:{r+3}], ' + ('0' if k == 0 else f'v[{c}:{c+15}]'))
                if dt == 0 and f + NH - 1 < 56: ld(f + NH - 1)
                if sh: sh.pop(0)()
        assert not sh
        self.ts(6, True)
        for lam in range(1, 4):
            a(f'''s_xor_b32 s{S_T0}, s{S_W}, {lam}
            s_mul_i32 s{S_T0}, s{S_T0}, 6144
            s_add_u32 s{S_T0}, s{S_T0}, {SLOT + (lam-1)*2048}
            v_add_u32 v{80+lam}, s{S_T0}, v{V_L16}''')
        a(f'''s_mul_i32 s{S_T0}, s{S_W}, 6144
        s_add_u32 s{S_T0}, s{S_T0}, {SLOT}
        v_add_u32 v80, s{S_T0}, v{V_L16}''')
        for tt in range(2):
            for lam in range(1, 4):
                for q in range(2):
                    c = ACC + 32 * tt + 8 * lam + 4 * q
                    a.lds(f'ds_write_b128 v{80+lam}, v[{c}:{c+3}] offset:{2*SLOT*tt + 1024*q}')
        a.wait_all(vm=False)
        a('s_barrier')
        RS = 84; OUTP = 88
        tk = {}
        for tt in range(2):
            a.lds(f'ds_read_b128 v[{96+8*tt}:{99+8*tt}], v{V_T0} offset:{1024*tt}')
            tk['s', tt] = a.lds(f'ds_read_b128 v[{100+8*tt}:{103+8*tt}], v{V_T0} offset:{1024*tt+16}')
        for tt in range(2):
            for n in range(6):
                c = ACC + 32 * tt + 8 + 4 * n
                tk[tt, n] = a.lds(f'ds_read_b128 v[{c}:{c+3}], v80 offset:{2*SLOT*tt + 1024*n}')
        a(f'v_mov_b32 v112, s{S_K2}\nv_mov_b32 v113, s{S_K2+1}')
        for tt in range(2):
            b = 96 + 8 * tt
            a.wait(lg=tk['s', tt])
            a(f'''v_pk_add_f32 {P(b)}, {P(b)}, {P(b+2)}
            v_pk_add_f32 {P(b+4)}, {P(b+4)}, {P(b+6)}
            v_pk_add_f32 {P(b)}, {P(b)}, {P(b+4)}
            v_pk_fma_f32 {P(b)}, {P(b)}, s[{S_K1}:{S_K1+1}], v[112:113]
            v_fma_f32 v{b+1}, -v{b}, v{b}, v{b+1}
            v_max_f32 v{b+1}, v113, v{b+1}
            v_rsq_f32 v{RS+2*tt}, v{b+1}''')
        for tt in range(2):
            c = ACC + 32 * tt
            for i in range(4):
                a(f'v_lshlrev_b32 v{96+8*tt+2*i}, 16, v{RES+4*tt+i}\nv_and_b32 v{97+8*tt+2*i}, 0xffff0000, v{RES+4*tt+i}')
            for n in range(6):
                a.wait(lg=tk[tt, n])
                for i in range(2):
                    d = c + 4 * (n & 1) + 2 * i
                    a(f'v_pk_add_f32 {P(d)}, {P(d)}, {P(c+8+4*n+2*i)}')
            for i in range(4):
                a(f'v_pk_fma_f32 {P(c+2*i)}, {P(c+2*i)}, {P(RS+2*tt)}, {P(96+8*tt+2*i)} op_sel_hi:[1,0,1]')
            for i in range(4):
                a(f'v_cvt_pk_bf16_f32 v{OUTP+4*tt+i}, v{c+2*i}, v{c+2*i+1}')
        self.OUTP = OUTP

    def out_mid(self):
        a = self.a
        OUTP = self.OUTP
        RP = 40
        a(f'''s_mul_i32 s{S_T0}, s{S_W}, {64*RP}
        v_and_b32 v16, 31, v{V_LANE}
        v_lshrrev_b32 v17, 5, v{V_LANE}
        v_mul_u32_u24 v18, {RP}, v16
        v_lshl_add_u32 v18, v17, 3, v18
        v_add_u32 v18, s{S_T0}, v18''')
        for tt in range(2):
            a.lds(f'ds_write_b64 v18, v[{OUTP+4*tt}:{OUTP+4*tt+1}] offset:{32*RP*tt}')
            a.lds(f'ds_write_b64 v18, v[{OUTP+4*tt+2}:{OUTP+4*tt+3}] offset:{32*RP*tt+16}')
        a(f'''v_lshrrev_b32 v19, 4, v{V_LANE}
        v_bfe_u32 v20, v{V_LANE}, 2, 2
        v_lshl_add_u32 v20, v19, 3, v20
        v_mul_u32_u24 v20, {RP}, v20
        v_and_b32 v21, 3, v{V_LANE}
        v_lshl_add_u32 v20, v21, 3, v20
        v_add_u32 v20, s{S_T0}, v20''')
        tk = {}
        for tt in range(2):
            a.lds(f'ds_read_b64_tr_b16 v[{24+4*tt}:{25+4*tt}], v20 offset:{32*RP*tt}')
            tk[tt] = a.lds(f'ds_read_b64_tr_b16 v[{26+4*tt}:{27+4*tt}], v20 offset:{32*RP*tt+4*RP}')
        for i in range(4): a(f'v_mov_b32 v{32+i}, 0')
        for tt in range(2):
            for i in range(4):
                a(f'v_dot2c_f32_bf16 v{32+2*tt}, s{S_T7}, v{OUTP+4*tt+i}\nv_dot2c_f32_bf16 v{33+2*tt}, v{OUTP+4*tt+i}, v{OUTP+4*tt+i}')
        a(f'''v_mul_u32_u24 v22, 7168, v19
        v_and_b32 v21, 15, v{V_LANE}
        v_lshl_add_u32 v22, v21, 4, v22
        s_lshl_b32 s{S_T0}, s{S_CB}, 2
        s_add_u32 s{S_T0}, s{S_T0}, s{S_W}
        s_lshl_b32 s{S_T0}, s{S_T0}, 8
        s_add_u32 s{S_T0}, s{S_T0}, {WS_X2}
        s_mul_i32 s{S_T1}, s{S_TE}, {SLOT}
        s_add_u32 s{S_T1}, s{S_T1}, s{S_T0}
        s_add_u32 s{S_T2}, s{S_T1}, {32*SLOT}
        v_permlane32_swap_b32 v32, v33
        v_permlane32_swap_b32 v34, v35
        s_lshl_b32 s{S_T0}, s{S_W}, 2
        v_add_u32 v23, {L_MISC+2048}, v{V_L16}
        v_add_u32 v36, s{S_T0}, v23
        v_add_f32 v32, v32, v33
        v_add_f32 v34, v34, v35''')
        a.lds('ds_write_b32 v36, v32')
        a.lds('ds_write_b32 v36, v34 offset:1024')
        for tt in range(2):
            a.wait(lg=tk[tt])
            a.vmem(f'buffer_store_dwordx4 v[{24+4*tt}:{27+4*tt}], v22, s[{R_WS}:{R_WS+3}], s{S_T1+tt} offen sc1')
        a.wait_all(vm=False)
        a('s_barrier')
        sk = self.lab()
        a(f'''s_cmp_ge_u32 s{S_W}, 2
        s_cbranch_scc1 {sk}
        s_lshl_b32 s{S_T0}, s{S_W}, 10
        v_add_u32 v23, s{S_T0}, v23
        ds_read_b128 v[40:43], v23
        s_lshl_b32 s{S_T0}, s{S_W}, 5
        s_add_u32 s{S_T0}, s{S_T0}, s{S_TE}
        s_lshl_b32 s{S_T0}, s{S_T0}, 8
        s_add_u32 s{S_T0}, s{S_T0}, {WS_ST2}
        v_lshlrev_b32 v16, 3, v16
        v_lshl_add_u32 v16, v17, 2, v16
        s_waitcnt lgkmcnt(0)
        v_add_f32 v40, v40, v41
        v_add_f32 v42, v42, v43
        v_add_f32 v40, v40, v42
        buffer_atomic_add_f32 v40, v16, s[{R_WS}:{R_WS+3}], s{S_T0} offen
        {sk}:''')

    def out_final(self):
        a = self.a
        OUTP = self.OUTP
        a(f'''v_and_b32 v16, 31, v{V_LANE}
        v_lshrrev_b32 v17, 5, v{V_LANE}
        v_mul_u32_u24 v18, 896, v16
        v_lshl_add_u32 v18, v17, 4, v18
        s_lshl_b32 s{S_T0}, s{S_CB}, 2
        s_add_u32 s{S_T0}, s{S_T0}, s{S_W}
        s_lshl_b32 s{S_T0}, s{S_T0}, 5
        s_mul_i32 s{S_T1}, s{S_TE}, {SLOT}
        s_add_u32 s{S_T0}, s{S_T0}, s{S_T1}
        v_add_u32 v18, s{S_T0}, v18
        v_add_u32 v19, {32*SLOT}, v18''')
        for tt in range(2):
            o = OUTP + 4 * tt
            a(f'v_permlane32_swap_b32 v{o}, v{o+2}\nv_permlane32_swap_b32 v{o+1}, v{o+3}')
            a.vmem(f'global_store_dwordx4 v{18+tt}, v[{o}:{o+3}], s[{S_OUT}:{S_OUT+1}]')

    def helper(self):
        a = self.a
        a('L_helper:')
        self.flag0()
        lp = self.lab()
        a(f'''v_lshlrev_b32 v16, 7, v0
        s_lshr_b32 s{S_T0}, s2, 3
        s_lshl_b32 s{S_T0}, s{S_T0}, 15''')
        for srd in (R_W1, R_W2):
            a(f's_mov_b32 s{S_T1}, s{S_T0}')
            for i in range(13):
                a(f'buffer_load_dword v{20+i}, v16, s[{srd}:{srd+3}], s{S_T1} offen\ns_add_u32 s{S_T1}, s{S_T1}, {4*32768}')
        a('s_waitcnt vmcnt(0)\ns_branch L_end')

    def dump_ts(self):
        a = self.a
        if not self.diag: return
        a.wait_all(force=True)
        self.ts(19 - 0, False)
        a(f'''s_lshl_b32 s{S_T0}, s2, 2
        s_add_u32 s{S_T0}, s{S_T0}, s{S_W}
        s_lshl_b32 s{S_T0}, s{S_T0}, 7
        s_add_u32 s{S_T0}, s{S_T0}, {WS_TS}
        s_mov_b64 exec, 1''')
        for i in range(20):
            a(f'v_mov_b32 v16, s{S_TS+i}\nbuffer_store_dword v16, off, s[{R_WS}:{R_WS+3}], s{S_T0} offset:{4*i}')
        a(f'v_mov_b32 v16, s{S_SPIN}\nbuffer_store_dword v16, off, s[{R_WS}:{R_WS+3}], s{S_T0} offset:80')
        a(f'v_mov_b32 v16, s{S_LOCAL}\nbuffer_store_dword v16, off, s[{R_WS}:{R_WS+3}], s{S_T0} offset:84')

    def dump_lds(self, lo, n):
        a = self.a
        a.wait_all(force=True); a('s_barrier')
        a(f's_mul_i32 s{S_T0}, s2, 0x28000\ns_add_u32 s{S_T0}, s{S_T0}, {WS_DUMP}\nv_lshlrev_b32 v16, 4, v0\nv_add_u32 v17, {lo}, v16')
        for i in range((n + 4095) // 4096):
            a(f'''ds_read_b128 v[20:23], v17
            s_waitcnt lgkmcnt(0)
            buffer_store_dwordx4 v[20:23], v16, s[{R_WS}:{R_WS+3}], s{S_T0} offen
            s_waitcnt vmcnt(0)
            v_add_u32 v16, 4096, v16
            v_add_u32 v17, 4096, v17''')

    def build(self):
        a = self.a
        if self.diag:
            for i in range(20): a(f's_mov_b32 s{S_TS+i}, 0')
        self.entry()
        a('s_cmp_lt_u32 s2, 32\ns_cbranch_scc1 L_helper')
        st = (a.vm, a.vm_done, a.lg, a.lg_done)
        self.kgen()
        self.ts(17)
        if self.stop == 'kgen':
            self.dump_lds(L_KC, 8 * KCS); a('s_branch L_end')
        self.wait_flag0()
        self.ts(18)
        a.wait_all(force=True)
        a('L_layer:')
        self.conv()
        self.gsignal()
        self.ts(3, True)
        sk = self.lab()
        a(f's_cmp_lg_u32 s{S_LAYER}, 0\ns_cbranch_scc1 {sk}')
        self.weights()
        self.ts(16)
        a(f'{sk}:')
        self.gwait()
        self.gemm1()
        self.gemm2()
        a(f's_cmp_lg_u32 s{S_LAYER}, 0\ns_cbranch_scc1 L_final')
        sv = (a.vm, a.vm_done, a.lg, a.lg_done)
        self.out_mid()
        self.gsignal()
        self.ts(7)
        a(f'''s_mov_b32 s{S_LAYER}, 1
        s_mov_b32 s{S_XIN}, {WS_X2}
        s_mov_b32 s{S_STIN}, {WS_ST2}
        s_mov_b32 s{S_XOUT}, {WS_X3}
        s_mov_b32 s{S_HB}, {WS_H1}
        s_add_u32 s{S_HF}, s{S_HF}, 0x4000''')
        self.gwait()
        self.ts(8)
        a.wait_all(force=True)
        a('s_branch L_layer')
        a('L_final:')
        a.vm, a.vm_done, a.lg, a.lg_done = sv
        self.out_final()
        self.dump_ts()
        if self.pad is not None:
            a(f'''L_pad:
            s_memrealtime s[{S_TSP}:{S_TSP+1}]
            s_waitcnt lgkmcnt(0)
            s_sub_u32 s{S_T0}, s{S_TSP}, s{S_TS+self.pad}
            s_cmp_lt_u32 s{S_T0}, 10000
            s_cbranch_scc1 L_pad''')
        a('s_endpgm')
        a.vm, a.vm_done, a.lg, a.lg_done = st
        self.helper()
        a('L_end:\ns_endpgm')
        body = a.text()
        head = open('interleave_layers__ssm_conv_s4__dense_activation_relu__prompt.s.ref').read().split('; Override launch')[0]
        src = head + f'; @launch grid=(256,1,1) block=(256,1,1) lds={LDS_BYTES}\n'
        src += f'''.amdgcn_target "amdgcn-amd-amdhsa--gfx950"
.text
.globl {KNAME}
.p2align 8
.type {KNAME},@function
{KNAME}:
{body}
.section .rodata,"a"
.p2align 6
.amdhsa_kernel {KNAME}
  .amdhsa_next_free_vgpr 512
  .amdhsa_next_free_sgpr 102
  .amdhsa_accum_offset 256
  .amdhsa_group_segment_fixed_size 0
  .amdhsa_kernarg_size 120
  .amdhsa_user_sgpr_count 2
  .amdhsa_user_sgpr_kernarg_segment_ptr 1
  .amdhsa_system_sgpr_workgroup_id_x 1
  .amdhsa_float_denorm_mode_32 3
.end_amdhsa_kernel
'''
        return src

if __name__ == '__main__':
    import argparse
    ap = argparse.ArgumentParser()
    ap.add_argument('-o', default='k.s')
    ap.add_argument('--diag', action='store_true')
    ap.add_argument('--stop', default=None)
    ap.add_argument('--pad', type=int, default=None)
    args = ap.parse_args()
    g = Gen(args.diag, args.stop, args.pad)
    open(args.o, 'w').write(g.build())
    print('wrote', args.o, 'auto nops', g.a.nops_added, 'lines', len(g.a.lines))
```

```python
import sys, struct
sys.path.insert(0, 'work')
from gasm import *

KNAME = 'interleave_layers__ssm_conv_s4__dense_activation_relu__prompt_kernel'
def f2u(x): return struct.unpack('<I', struct.pack('<f', x))[0]
def fx(x): return hex(f2u(x))

WS_EPOCH = 0x0
WS_FLG0 = 0x1000
WS_CNT = 0x4000
NSYNC = 3
WS_HFLG = 0x20000
WS_ST0 = 0x30000
WS_ST2 = 0x34000
WS_TS = 0x40000
WS_XT0 = 0x100000
WS_X1 = 0x300000
WS_X2 = 0x500000
WS_X3 = 0x700000
WS_H0 = 0x1000000
WS_H1 = 0x1800000
WS_DUMP = 0x2000000
WS_SIZE = 0x10000000

SLOT = 28672
L_KC = 114688
KCS = 4160
L_UI = 147968
UIS = 4608
L_MISC = 157184
LDS_BYTES = 163840
IMG = 60 * 528
L_TB = 126720
PH = 2112
PWS = 4 * PH

S_X0, S_ARE, S_AIM, S_BRE, S_BIM, S_CRE, S_CIM, S_LDT = 4, 6, 8, 10, 12, 14, 16, 18
S_DSK, S_W1, S_W2, S_OUT, S_DBG, S_WS = 20, 24, 26, 28, 30, 32
S_W, S_G, S_J, S_P, S_TAG, S_LAYER, S_SUB, S_NB, S_PI, S_CB = 34, 35, 36, 37, 38, 39, 40, 41, 42, 43
S_DK = 44
S_LOCAL, S_SPIN = 46, 47
S_T0, S_T1, S_T2, S_T3 = 48, 49, 50, 51
R_W1, R_W2, R_WS = 52, 56, 60
S_XIN, S_STIN, S_XOUT, S_HB, S_HF, S_CNT = 64, 65, 66, 67, 68, 69
S_K1 = 70
S_K2 = 72
S_T4, S_T5, S_T6, S_T7 = 74, 75, 76, 77
S_TE, S_TL = 78, 79
S_TS = 80
S_TSP = 100

V_TID, V_LANE, V_TR, V_L16, V_CA, V_CB, V_PW, V_PR, V_XIN, V_XOUT, V_ST, V_UW = range(12)
V_T0, V_T1, V_T2, V_T3 = 12, 13, 14, 15
V_W1 = 144
V_TS = 143

SPIN_MAX = 1 << 18

class Gen:
    def __init__(self, diag=False, stop=None, pad=None):
        self.pad = pad; self.tsn = {'start': 0}
        self.a = Asm(); self.diag = diag; self.stop = stop; self.nlab = 0; self.nts = 0
    def lab(self, p='L'):
        self.nlab += 1; return f'{p}{self.nlab}'
    def ts(self, idx, per_layer=False):
        if not self.diag: return
        a = self.a
        a.wait_all(vm=False, lg=True)
        a(f's_memrealtime s[{S_TSP}:{S_TSP+1}]\ns_waitcnt lgkmcnt(0)')
        if idx not in self.tsn: self.tsn[idx] = len(self.tsn)
        k = self.tsn[idx]
        assert k < 32
        if per_layer:
            a(f's_lshl_b32 s{S_TS}, s{S_LAYER}, 5\ns_add_u32 m0, s{S_TS}, {k}\nv_writelane_b32 v{V_TS}, s{S_TSP}, m0')
        else:
            a(f'v_writelane_b32 v{V_TS}, s{S_TSP}, {k}')
        if self.pad == idx or (per_layer and self.pad == idx + '1'):
            a(f's_mov_b32 s{S_TS+1}, s{S_TSP}')
        if per_layer and self.pad == idx + '0':
            a(f's_cmp_eq_u32 s{S_LAYER}, 0\ns_cselect_b32 s{S_TS+1}, s{S_TSP}, s{S_TS+1}')

    def spin_tail(self, loop, done):
        a = self.a
        a(f'''s_cbranch_vccz {done}
        s_add_u32 s{S_SPIN}, s{S_SPIN}, 1
        s_cmp_lt_u32 s{S_SPIN}, {SPIN_MAX}
        s_cbranch_scc1 {loop}
        {done}:''')

    def gsignal(self):
        a = self.a
        a.wait_all(force=True)
        a('s_barrier')
        sk = self.lab()
        a(f'''s_cmp_lg_u32 s{S_W}, 0
        s_cbranch_scc1 {sk}
        s_lshl_b32 s{S_T0}, s{S_G}, 8
        s_add_u32 s{S_T0}, s{S_T0}, s{S_CNT}
        v_lshlrev_b32 v{V_T0}, 11, v{V_LANE}
        v_mov_b32 v{V_T1}, 1
        s_mov_b64 exec, 0xff
        buffer_atomic_add v{V_T1}, v{V_T0}, s[{R_WS}:{R_WS+3}], s{S_T0} offen
        s_mov_b64 exec, -1
        {sk}:''')
    def gwait(self):
        a = self.a
        sk = self.lab(); lp = self.lab(); dn = self.lab()
        a(f'''s_cmp_lg_u32 s{S_W}, 0
        s_cbranch_scc1 {sk}
        s_lshl_b32 s{S_T0}, s{S_G}, 11
        s_add_u32 s{S_T0}, s{S_T0}, s{S_CNT}
        v_and_b32 v{V_T0}, 7, v{V_LANE}
        v_lshlrev_b32 v{V_T0}, 8, v{V_T0}
        {lp}:
        buffer_load_dword v{V_T1}, v{V_T0}, s[{R_WS}:{R_WS+3}], s{S_T0} offen sc1
        s_waitcnt vmcnt(0)
        v_cmp_ne_u32 vcc, 28, v{V_T1}''')
        self.spin_tail(lp, dn)
        a(f'''{sk}:
        s_add_u32 s{S_CNT}, s{S_CNT}, 0x4000
        s_barrier''')
        a.wait_all(force=False)

    def entry(self):
        a = self.a
        a(f'''s_cmp_ge_u32 s2, 256
        s_cbranch_scc1 L_end
        s_load_dwordx16 s[4:19], s[0:1], 0
        s_load_dwordx8 s[20:27], s[0:1], 64
        s_load_dwordx4 s[28:31], s[0:1], 96
        s_load_dwordx2 s[32:33], s[0:1], 112''')
        if self.diag:
            a(f's_memrealtime s[{S_TSP}:{S_TSP+1}]')
        a(f'''s_getpc_b64 s[{S_T0}:{S_T1}]
        L_pcbase:
        s_lshr_b32 s{S_T2}, s2, 3
        s_min_u32 s{S_T2}, s{S_T2}, (L_end-L_pcbase)/4096-1
        s_lshl_b32 s{S_T2}, s{S_T2}, 12
        v_lshlrev_b32 v{V_T0}, 4, v0
        v_add_u32 v{V_T0}, s{S_T2}, v{V_T0}''')
        a.vmem(f'global_load_dwordx4 v[136:139], v{V_T0}, s[{S_T0}:{S_T1}]')
        a(f'''v_and_b32 v{V_LANE}, 63, v0
        v_lshrrev_b32 v{V_T1}, 6, v0
        v_lshlrev_b32 v{V_L16}, 4, v{V_LANE}
        v_readfirstlane_b32 s{S_W}, v{V_T1}
        s_and_b32 s{S_G}, s2, 7
        s_lshr_b32 s{S_J}, s2, 3
        s_sub_u32 s{S_J}, s{S_J}, 4
        s_max_i32 s{S_J}, s{S_J}, 0
        s_mul_i32 s{S_P}, s{S_G}, 28
        s_add_u32 s{S_P}, s{S_P}, s{S_J}
        s_mov_b32 s{S_SPIN}, 0
        s_mov_b32 s{S_LAYER}, 0''')
        a(f'''s_lshl_b32 s{S_T2}, s2, 2
        s_add_u32 s{S_T2}, s{S_T2}, s{S_W}
        s_mul_i32 s{S_T2}, s{S_T2}, 1792
        v_lshrrev_b32 v16, 5, v{V_LANE}
        v_and_b32 v17, 31, v{V_LANE}
        v_mul_u32_u24 v18, 896, v16
        v_lshl_add_u32 v18, v17, 4, v18
        v_add_u32 v18, s{S_T2}, v18''')
        for r in range(20, 28): a(f'v_mov_b32 v{r}, 0')
        a(f'''s_lshl_b32 s{S_T3}, s{S_P}, 2
        s_add_u32 s{S_T3}, s{S_T3}, s{S_W}
        s_lshl_b32 s{S_T3}, s{S_T3}, 8
        v_lshl_add_u32 v19, v{V_LANE}, 2, s{S_T3}
        v_mov_b32 v{V_T2}, 0
        s_lshl_b32 s{S_T4}, s{S_P}, 2
        s_waitcnt lgkmcnt(0)''')
        if self.diag:
            a(f'v_mov_b32 v{V_TS}, 0\nv_writelane_b32 v{V_TS}, s{S_TSP}, 0\ns_mov_b32 s{S_TS+1}, s{S_TSP}')
            self.ts('karg')
            a(f's_memtime s[{S_TSP}:{S_TSP+1}]\ns_waitcnt lgkmcnt(0)\nv_writelane_b32 v{V_TS}, s{S_TSP}, 60')
        a(f'''s_mov_b32 exec_lo, 0x0fffffff
        s_mov_b32 exec_hi, 0x0fffffff''')
        a.vmem(f'global_load_dwordx4 v[20:23], v18, s[{S_X0}:{S_X0+1}]')
        t_rows = a.vmem(f'global_load_dwordx4 v[24:27], v18, s[{S_X0}:{S_X0+1}] offset:448')
        a('s_mov_b64 exec, -1')
        t_ep = a.vmem(f'global_load_dword v28, v{V_T2}, s[{S_WS}:{S_WS+1}] sc1')
        for i, s in enumerate((S_ARE, S_AIM, S_BRE, S_BIM, S_CRE, S_CIM)):
            self.t_par = a.vmem(f'global_load_dword v{30+i}, v19, s[{s}:{s+1}]')
        a(f'''s_load_dword s{S_T5}, s[{S_LDT}:{S_LDT+1}], s{S_T4}
        s_load_dword s{S_T6}, s[{S_DSK}:{S_DSK+1}], s{S_T4}''')
        a(f'''s_mov_b32 s{R_WS}, s{S_WS}
        s_and_b32 s{R_WS+1}, s{S_WS+1}, 0xffff
        s_mov_b32 s{R_WS+2}, {WS_SIZE}
        s_mov_b32 s{R_WS+3}, 0x20000
        s_mov_b32 s{R_W1}, s{S_W1}
        s_and_b32 s{R_W1+1}, s{S_W1+1}, 0xffff
        s_mov_b32 s{R_W1+2}, {448*1792*2}
        s_mov_b32 s{R_W1+3}, 0x20000
        s_mov_b32 s{R_W2}, s{S_W2}
        s_and_b32 s{R_W2+1}, s{S_W2+1}, 0xffff
        s_mov_b32 s{R_W2+2}, {448*1792*2}
        s_mov_b32 s{R_W2+3}, 0x20000''')
        for r in range(36, 40): a(f'v_mov_b32 v{r}, 0')
        a(f'''s_cmp_ge_u32 s{S_J}, 14
        s_cselect_b32 s{S_T0}, 1, 0
        s_cselect_b32 s{S_T1}, 14, 0
        s_lshl_b32 s{S_SUB}, s{S_G}, 1
        s_add_u32 s{S_SUB}, s{S_SUB}, s{S_T0}
        s_sub_u32 s{S_NB}, s{S_J}, s{S_T1}
        s_cmp_ge_u32 s{S_NB}, 7
        s_cselect_b32 s{S_PI}, 1, 0
        s_cselect_b32 s{S_T1}, 7, 0
        s_sub_u32 s{S_CB}, s{S_NB}, s{S_T1}
        s_lshl_b32 s{S_TE}, s{S_SUB}, 1
        s_add_u32 s{S_TE}, s{S_TE}, s{S_PI}
        s_add_u32 s{S_TL}, s{S_TE}, 32
        s_mov_b32 s{S_XIN}, {WS_XT0}
        s_mov_b32 s{S_STIN}, {WS_ST0}
        s_mov_b32 s{S_XOUT}, {WS_X1}
        s_mov_b32 s{S_HB}, {WS_H0}
        s_lshl_b32 s{S_HF}, s{S_SUB}, 9
        s_add_u32 s{S_HF}, s{S_HF}, {WS_HFLG}
        s_mov_b32 s{S_CNT}, {WS_CNT}
        s_mov_b32 s{S_K1}, {fx(1/448)}
        s_mov_b32 s{S_K1+1}, {fx(1/448)}
        s_mov_b32 s{S_K2}, 0
        s_mov_b32 s{S_K2+1}, {fx(1e-5)}''')
        a(f'''v_lshrrev_b32 v40, 5, v{V_LANE}
        v_lshlrev_b32 v{V_TR}, 8, v40
        v_bfe_u32 v41, v{V_LANE}, 2, 2
        v_lshl_or_b32 v{V_TR}, v41, 6, v{V_TR}
        v_bfe_u32 v42, v{V_LANE}, 4, 1
        v_lshl_or_b32 v{V_TR}, v42, 5, v{V_TR}
        v_and_b32 v43, 3, v{V_LANE}
        v_lshl_or_b32 v{V_TR}, v43, 3, v{V_TR}''')
        a(f'''s_lshr_b32 s{S_T0}, s{S_W}, 1
        s_and_b32 s{S_T1}, s{S_W}, 1
        s_lshl_b32 s{S_T1}, s{S_T1}, 8
        s_mul_i32 s{S_T2}, s{S_T0}, {4*KCS}
        s_add_u32 s{S_T2}, s{S_T2}, {L_KC+328+3*KCS}
        s_sub_u32 s{S_T2}, s{S_T2}, s{S_T1}
        v_lshrrev_b32 v44, 4, v{V_LANE}
        v_lshlrev_b32 v45, 4, v44
        v_mul_u32_u24 v46, {KCS}, v43
        v_lshl_add_u32 v46, v41, 3, v46
        v_add_u32 v46, v45, v46
        v_sub_u32 v{V_CA}, s{S_T2}, v46
        s_mul_i32 s{S_T2}, s{S_T0}, {UIS}
        s_add_u32 s{S_T2}, s{S_T2}, {L_UI+528-192}
        s_sub_u32 s{S_T2}, s{S_T2}, s{S_T1}
        v_and_b32 v47, 15, v{V_LANE}
        v_lshl_add_u32 v{V_CB}, v47, 5, s{S_T2}
        v_sub_u32 v{V_CB}, v{V_CB}, v45
        s_mul_i32 s{S_T2}, s{S_W}, {PWS}
        v_mul_u32_u24 v{V_PW}, {PH}, v44
        v_lshl_add_u32 v{V_PW}, v47, 4, v{V_PW}
        v_add_u32 v{V_PW}, s{S_T2}, v{V_PW}
        v_and_b32 v46, 1, v0
        v_mul_u32_u24 v{V_PR}, {2*PH}, v46
        v_lshrrev_b32 v46, 1, v0
        v_lshl_add_u32 v{V_PR}, v46, 4, v{V_PR}
        s_lshl_b32 s{S_T2}, s{S_P}, 5
        v_mul_u32_u24 v{V_XIN}, 7168, v0
        v_add_u32 v{V_XIN}, s{S_T2}, v{V_XIN}
        s_lshl_b32 s{S_T2}, s{S_P}, 7
        v_lshrrev_b32 v46, 2, v0
        v_mul_u32_u24 v{V_XOUT}, {SLOT}, v46
        v_lshl_add_u32 v{V_XOUT}, v43, 4, v{V_XOUT}
        v_add_u32 v{V_XOUT}, s{S_T2}, v{V_XOUT}
        v_lshlrev_b32 v{V_ST}, 6, v0
        v_lshl_add_u32 v{V_UW}, v0, 4, 0
        v_add_u32 v{V_UW}, {L_UI+512}, v{V_UW}''')
        a(f'''v_mul_u32_u24 v46, {UIS}, v40
        v_lshl_add_u32 v46, v17, 4, v46
        v_add_u32 v46, {L_UI}, v46''')
        a('s_waitcnt lgkmcnt(0)')
        a.lds(f'ds_write_b128 v46, v[36:39]')
        a(f'''s_lshl_b32 s{S_DK}, s{S_T6}, 16
        s_and_b32 s{S_DK+1}, s{S_T6}, 0xffff0000''')
        a(f'''s_mul_i32 s{S_T0}, s{S_W}, 1920
        s_add_u32 s{S_T0}, s{S_T0}, {L_TB}
        v_mul_u32_u24 v46, 960, v16
        v_lshl_add_u32 v46, v17, 4, v46
        v_add_u32 v46, s{S_T0}, v46
        s_lshl_b32 s{S_T0}, s{S_W}, 7
        s_add_u32 s{S_T0}, s{S_T0}, {L_TB}
        v_mul_u32_u24 v47, 960, v41
        v_lshl_add_u32 v47, v44, 5, v47
        v_lshl_add_u32 v47, v43, 3, v47
        v_add_u32 v47, s{S_T0}, v47
        v_mov_b32 v48, 0
        v_mov_b32 v49, 0
        s_mov_b32 s{S_T7}, 0x3f803f80''')
        self.ts('pre_rows')
        a.wait(vm=t_rows)
        self.ts('rows')
        a(f'''s_mov_b32 exec_lo, 0x0fffffff
        s_mov_b32 exec_hi, 0x0fffffff''')
        a.lds('ds_write_b128 v46, v[20:23]')
        a.lds('ds_write_b128 v46, v[24:27] offset:448')
        a('s_mov_b64 exec, -1')
        for r in range(20, 28):
            a(f'v_dot2c_f32_bf16 v48, s{S_T7}, v{r}\nv_dot2c_f32_bf16 v49, v{r}, v{r}')
        a.wait_all(vm=False)
        a('s_barrier')
        a.lds('ds_read_b64_tr_b16 v[20:21], v47')
        a.lds('ds_read_b64_tr_b16 v[22:23], v47 offset:3840')
        a.lds('ds_read_b64_tr_b16 v[24:25], v47 offset:512')
        a.lds('ds_read_b64_tr_b16 v[26:27], v47 offset:4352')
        for m in ('quad_perm:[1,0,3,2]', 'quad_perm:[2,3,0,1]', 'row_half_mirror', 'row_mirror'):
            a(f'v_add_f32_dpp v48, v48, v48 {m} row_mask:0xf bank_mask:0xf\nv_add_f32_dpp v49, v49, v49 {m} row_mask:0xf bank_mask:0xf')
        a('''v_add_f32_dpp v48, v48, v48 row_bcast:15 row_mask:0xa bank_mask:0xf
        v_add_f32_dpp v49, v49, v49 row_bcast:15 row_mask:0xa bank_mask:0xf''')
        a.wait(vm=self.t_par)
        sk = self.lab()
        a(f'''s_lshl_b32 s{S_T0}, s2, 7
        s_add_u32 s{S_T0}, s{S_T0}, {WS_ST2}
        s_lshl_b32 s{S_T1}, s2, 8
        s_add_u32 s{S_T1}, s{S_T1}, {WS_CNT}
        s_cmp_eq_u32 s{S_W}, 0
        s_cselect_b32 s{S_T0}, s{S_T0}, s{S_T1}
        s_cselect_b32 s{S_T1}, 2, {NSYNC}
        s_cmp_ge_u32 s{S_W}, 2
        s_cselect_b32 s{S_T1}, 0, s{S_T1}
        s_lshr_b32 s{S_T2}, s2, 6
        s_cmp_ge_u32 s{S_T2}, s{S_T1}
        s_cbranch_scc1 {sk}
        s_mov_b64 exec, 0xff
        buffer_store_dwordx4 v[36:39], v{V_L16}, s[{R_WS}:{R_WS+3}], s{S_T0} offen sc1
        s_mov_b64 exec, -1
        {sk}:''')
        a(f'''s_lshl_b32 s{S_T0}, s2, 2
        s_add_u32 s{S_T0}, s{S_T0}, s{S_W}
        s_lshl_b32 s{S_T0}, s{S_T0}, 4
        s_add_u32 s{S_T0}, s{S_T0}, {WS_ST0}
        v_lshlrev_b32 v46, 3, v16
        s_mov_b32 exec_lo, 0x10000
        s_mov_b32 exec_hi, 0x10000''')
        a.vmem(f'buffer_store_dwordx2 v[48:49], v46, s[{R_WS}:{R_WS+3}], s{S_T0} offen sc1')
        a(f'''s_mov_b64 exec, -1
        s_mul_i32 s{S_T0}, s2, 7168
        s_lshl_b32 s{S_T1}, s{S_W}, 10
        s_add_u32 s{S_T0}, s{S_T0}, s{S_T1}
        s_add_u32 s{S_T0}, s{S_T0}, {WS_XT0}
        s_add_u32 s{S_T1}, s{S_T0}, 4096''')
        a.wait_all(vm=False)
        a.vmem(f'buffer_store_dwordx4 v[20:23], v{V_L16}, s[{R_WS}:{R_WS+3}], s{S_T0} offen sc1')
        sk = self.lab()
        a(f's_cmp_eq_u32 s{S_W}, 3\ns_cbranch_scc1 {sk}')
        a(f'buffer_store_dwordx4 v[24:27], v{V_L16}, s[{R_WS}:{R_WS+3}], s{S_T1} offen sc1')
        a(f'{sk}:')
        self.ts('params')
        a(f'''v_readfirstlane_b32 s{S_TAG}, v28
        s_add_u32 s{S_TAG}, s{S_TAG}, 16
        s_and_b32 s{S_TAG}, s{S_TAG}, 0xfffffff0''')

    def flag0(self):
        a = self.a
        a('s_waitcnt vmcnt(0)'); a.vm_done = a.vm
        a('s_barrier')
        sk = self.lab()
        a(f'''s_cmp_lg_u32 s{S_W}, 0
        s_cbranch_scc1 {sk}
        s_getreg_b32 s{S_T0}, hwreg(HW_REG_XCC_ID, 0, 4)
        s_or_b32 s{S_T0}, s{S_T0}, s{S_TAG}
        s_lshl_b32 s{S_T1}, s2, 2
        s_add_u32 s{S_T1}, s{S_T1}, {WS_FLG0}
        v_mov_b32 v{V_T0}, s{S_T0}
        v_mov_b32 v{V_T1}, 0
        s_mov_b64 exec, 1
        buffer_store_dword v{V_T0}, v{V_T1}, s[{R_WS}:{R_WS+3}], s{S_T1} offen sc1
        s_mov_b64 exec, -1
        {sk}:''')

    def wait_flag0(self):
        a = self.a
        lp = self.lab(); dn = self.lab()
        a(f'''s_and_b32 s{S_T1}, s{S_SUB}, 1
        s_mul_i32 s{S_T1}, s{S_T1}, 112
        s_add_u32 s{S_T1}, s{S_T1}, s{S_G}
        s_lshl_b32 s{S_T1}, s{S_T1}, 2
        s_add_u32 s{S_T1}, s{S_T1}, {WS_FLG0+128}
        v_min_u32 v{V_T0}, 13, v{V_LANE}
        v_lshlrev_b32 v{V_T0}, 5, v{V_T0}
        s_mov_b32 s{S_T0}, {WS_FLG0}
        {lp}:
        buffer_load_dwordx4 v[16:19], v{V_L16}, s[{R_WS}:{R_WS+3}], s{S_T0} offen sc1
        buffer_load_dword v21, v{V_T0}, s[{R_WS}:{R_WS+3}], s{S_T1} offen sc1
        s_waitcnt vmcnt(0)
        v_xor_b32 v16, s{S_TAG}, v16
        v_xor_b32 v17, s{S_TAG}, v17
        v_xor_b32 v18, s{S_TAG}, v18
        v_xor_b32 v19, s{S_TAG}, v19
        v_xor_b32 v20, s{S_TAG}, v21
        v_or3_b32 v16, v16, v17, v18
        v_or3_b32 v16, v16, v19, v20
        v_cmp_lt_u32 vcc, 15, v16''')
        self.spin_tail(lp, dn)
        a.vm_done = a.vm
        a(f'''v_readfirstlane_b32 s{S_T0}, v21
        v_cmp_ne_u32 vcc, s{S_T0}, v21
        s_cmp_eq_u64 vcc, 0
        s_cselect_b32 s{S_LOCAL}, 1, 0''')
        sk = self.lab()
        a(f'''s_lshl_b32 s{S_T0}, s2, 2
        s_add_u32 s{S_T0}, s{S_T0}, s{S_W}
        s_cmp_lg_u32 s{S_T0}, 128
        s_cbranch_scc1 {sk}
        v_mov_b32 v{V_T0}, s{S_TAG}
        v_mov_b32 v{V_T1}, 0
        s_mov_b64 exec, 1
        buffer_store_dword v{V_T0}, v{V_T1}, s[{R_WS}:{R_WS+3}], 0 offen sc1
        s_mov_b64 exec, -1
        s_waitcnt vmcnt(0)
        {sk}:''')

    def kgen(self):
        a = self.a
        P = lambda r: f'v[{r}:{r+1}]'
        LOG2E = 1.4426950408889634
        l_hi = struct.unpack('<f', struct.pack('<f', LOG2E))[0]
        l_lo = LOG2E - l_hi
        a(f'''s_lshl_b32 s{S_T0}, s{S_T5}, 16
        s_and_b32 s{S_T1}, s{S_T5}, 0xffff0000
        s_cmp_ge_u32 s{S_W}, 2
        s_cselect_b32 s{S_T0}, s{S_T1}, s{S_T0}
        v_mov_b32 v40, s{S_T0}
        v_mov_b32 v41, {fx(l_hi)}
        v_mul_f32 v42, v40, v41
        v_fma_f32 v43, v40, v41, -v42
        v_fmamk_f32 v43, v40, {fx(l_lo)}, v43
        v_exp_f32 v42, v42
        v_mul_f32 v43, {fx(0.6931471805599453)}, v43
        v_fma_f32 v42, v42, v43, v42
        v_cvt_pk_bf16_f32 v42, v42, v42
        v_lshlrev_b32 v42, 16, v42
        v_mov_b32 v43, v42''')
        DT = 42
        names = ['are', 'aim', 'bre', 'bim', 'cre', 'cim']
        R = {n: 44 + 2*i for i, n in enumerate(names)}
        for i, n in enumerate(names):
            a(f'v_lshlrev_b32 v{R[n]}, 16, v{30+i}\nv_and_b32 v{R[n]+1}, 0xffff0000, v{30+i}')
        SIG, TH = R['are'], R['aim']
        a(f'''v_pk_mul_f32 {P(SIG)}, {P(SIG)}, {P(DT)}
        v_pk_mul_f32 {P(TH)}, {P(TH)}, {P(DT)}
        v_mul_f32 v{SIG}, v41, v{SIG}
        v_mul_f32 v{SIG+1}, v41, v{SIG+1}
        v_mul_f32 v{TH}, 0.15915494, v{TH}
        v_mul_f32 v{TH+1}, 0.15915494, v{TH+1}''')
        TA, TB = 56, 58
        def cmul(o, x, y):
            a(f'''v_pk_mul_f32 {P(TA)}, {P(x+2)}, {P(y+2)}
            v_pk_mul_f32 {P(TB)}, {P(x+2)}, {P(y)}
            v_pk_fma_f32 {P(o+2)}, {P(x)}, {P(y+2)}, {P(TB)}
            v_pk_fma_f32 {P(o)}, {P(x)}, {P(y)}, {P(TA)} neg_lo:[0,0,1] neg_hi:[0,0,1]''')
        def direct(o, p):
            if p == 1:
                e, f = SIG, TH
            else:
                e, f = TA, TB
                for k in range(2):
                    a(f'v_mul_f32 v{TA+k}, {fx(float(p))}, v{SIG+k}\nv_mul_f32 v{TB+k}, {fx(float(p))}, v{TH+k}')
            a(f'''v_fract_f32 v{TB}, v{f}
            v_fract_f32 v{TB+1}, v{f+1}
            v_exp_f32 v{TA}, v{e}
            v_exp_f32 v{TA+1}, v{e+1}
            v_cos_f32 v{o}, v{TB}
            v_cos_f32 v{o+1}, v{TB+1}
            v_sin_f32 v{o+2}, v{TB}
            v_sin_f32 v{o+3}, v{TB+1}
            v_pk_mul_f32 {P(o)}, {P(o)}, {P(TA)}
            v_pk_mul_f32 {P(o+2)}, {P(o+2)}, {P(TA)}''')
        VW, VF = 16, 17
        a(f'''s_mul_i32 s{S_T0}, s{S_W}, {IMG}
        v_lshl_add_u32 v{VW}, v{V_LANE}, 3, s{S_T0}
        v_and_b32 v18, 31, v{V_LANE}
        v_lshrrev_b32 v19, 5, v{V_LANE}
        v_mul_u32_u24 v{VF}, 528, v18
        v_lshl_add_u32 v{VF}, v19, 4, v{VF}
        v_add_u32 v{VF}, s{S_T0}, v{VF}''')
        wr = [0]
        def emit(row, z, neg):
            t = 20 + 2 * (wr[0] % 4); wr[0] += 1
            s = '-' if neg else ''
            a(f'v_cvt_pk_bf16_f32 v{t}, v{z}, v{z+1}\nv_cvt_pk_bf16_f32 v{t+1}, {s}v{z+2}, {s}v{z+3}')
            a.lds(f'ds_write_b64 v{VW}, {P(t)} offset:{row*528}')
        from emu import YP0, YP1
        yrow = {}
        for rho, p in enumerate(YP0): yrow[p] = 8 * (rho >> 2) + (rho & 3)
        for rho, p in enumerate(YP1): yrow[p] = 8 * (rho >> 2) + 4 + (rho & 3)
        Z1, Z2, Z4, Z6, Z8, WW, WK, ZT, X = 60, 64, 68, 72, 76, 80, 84, 88, 92
        a(f'v_mov_b32 v20, 0x3f803f80\nv_mov_b32 v21, 0'); wr[0] = 1
        a.lds(f'ds_write_b64 v{VW}, v[20:21] offset:{yrow[0]*528}')
        direct(Z1, 1); emit(yrow[1], Z1, True)
        direct(Z8, 8); direct(WW, 256)
        cmul(Z2, Z1, Z1); emit(yrow[2], Z2, True)
        cmul(ZT, Z2, Z1); emit(yrow[3], ZT, True)
        cmul(Z4, Z2, Z2); emit(yrow[4], Z4, True)
        cmul(ZT, Z4, Z1); emit(yrow[5], ZT, True)
        cmul(Z6, Z4, Z2); emit(yrow[6], Z6, True)
        cmul(ZT, Z6, Z1); emit(yrow[7], ZT, True)
        emit(yrow[256], WW, True)
        for o, z in ((2, Z2), (4, Z4), (6, Z6), (8, Z8)):
            cmul(ZT, WW, z); emit(yrow[256+o], ZT, True)
        for k in range(2, 8):
            cmul(WK, WW if k == 2 else WK, WW); emit(yrow[256*k], WK, True)
            if k < 4:
                cmul(ZT, WK, Z4); emit(yrow[256*k+4], ZT, True)
            cmul(ZT, WK, Z8); emit(yrow[256*k+8], ZT, True)
        self.ts('pre_drain')
        self.flag0()
        self.ts('drained')
        cmul(X, R['cre'], R['bre'])
        a(f'v_pk_mul_f32 {P(X)}, {P(X)}, {P(DT)}\nv_pk_mul_f32 {P(X+2)}, {P(X+2)}, {P(DT)}')
        YF = 144; XF = 208
        for i in range(32):
            emit(28 + i, X, False)
            if 4 <= i < 20:
                s = i - 4
                a.lds(f'ds_read_b128 v[{YF+4*s}:{YF+4*s+3}], v{VF} offset:{32*s}')
            if i < 31: cmul(X, X, Z8)
        self.ts('xchain')
        tk = {}
        NXB = 12
        def xread(s):
            r = XF + 4 * (s % NXB)
            tk[s] = a.lds(f'ds_read_b128 v[{r}:{r+3}], v{VF} offset:{28*528+32*s}')
        for s in range(NXB): xread(s)
        D = 24
        for s in range(16):
            a.wait(lg=tk[s])
            r = XF + 4 * (s % NXB)
            a(f'v_mfma_f32_32x32x16_bf16 v[{D}:{D+15}], v[{YF+4*s}:{YF+4*s+3}], v[{r}:{r+3}], ' + ('0' if s == 0 else f'v[{D}:{D+15}]'))
            if s + NXB < 16: xread(s + NXB)
        a(f'''s_and_b32 s{S_T1}, s{S_W}, 1
        s_mul_i32 s{S_T0}, s{S_W}, {IMG}
        v_lshl_add_u32 v40, v18, 4, s{S_T0}
        s_xor_b32 s{S_T2}, s{S_W}, 1
        s_mul_i32 s{S_T2}, s{S_T2}, {IMG}
        v_lshl_add_u32 v41, v18, 4, s{S_T2}
        s_lshr_b32 s{S_T3}, s{S_W}, 1
        s_mul_i32 s{S_T3}, s{S_T3}, {4*KCS}
        s_add_u32 s{S_T3}, s{S_T3}, {L_KC+496}
        v_lshlrev_b32 v42, 4, v18
        v_sub_u32 v42, s{S_T3}, v42
        v_and_b32 v43, 1, v{V_LANE}
        v_cmp_eq_u32 vcc, 1, v43
        s_cmp_eq_u32 s{S_T1}, 0
        s_cselect_b32 s{S_T4}, -1, 0
        s_cselect_b32 s{S_T5}, 0, -1
        s_mov_b32 exec_lo, s{S_T5}
        s_mov_b32 exec_hi, s{S_T4}''')
        for q in range(4):
            a.lds(f'ds_write_b128 v40, v[{D+4*q}:{D+4*q+3}] offset:{512*q}')
        a(f's_mov_b32 exec_lo, s{S_T4}\ns_mov_b32 exec_hi, s{S_T5}')
        a.wait_all(vm=False)
        a('s_barrier')
        for q in range(4):
            a.lds(f'ds_read_b128 v[{44+4*q}:{47+4*q}], v41 offset:{512*q}')
        a(f'''v_lshrrev_b32 v60, 2, v18
        v_mul_u32_u24 v60, {KCS}, v60
        v_and_b32 v61, 3, v18
        v_lshl_add_u32 v60, v61, 4, v60
        v_add_u32 v60, {L_KC+4096}, v60
        v_mov_b32 v64, 0
        v_mov_b32 v65, 0
        v_mov_b32 v66, 0
        v_mov_b32 v67, 0''')
        t = a.lg
        a.lds('ds_write_b128 v60, v[64:67]')
        a.wait(lg=t)
        for q in range(8):
            a(f'v_pk_add_f32 {P(D+2*q)}, {P(D+2*q)}, {P(44+2*q)}')
        ch = [0]
        def chunk(blk, pairs):
            t = 44 + 4 * ch[0]; ch[0] += 1
            for k, (lo, hi) in enumerate(pairs):
                a(f'v_cvt_pk_bf16_f32 v{t+k}, v{lo}, v{hi}')
            a(f'ds_write_b128 v42, v[{t}:{t+3}] offset:{3584-512*blk}')
        l1 = self.lab(); l2 = self.lab()
        a(f's_cmp_eq_u32 s{S_T1}, 0\ns_cbranch_scc0 {l1}')
        chunk(0, [(D+7, D+6), (D+5, D+4), (D+3, D+2), (D+1, D+0)])
        chunk(1, [(D+12, D+11), (D+10, D+10), (D+10, D+9), (D+8, D+8)])
        chunk(2, [(D+15, D+15), (D+14, D+14), (D+14, D+13), (D+13, D+13)])
        a(f's_branch {l2}\n{l1}:')
        ch[0] = 0
        chunk(3, [(D+2, D+2), (D+1, D+1), (D+1, D+0), (D+0, D+0)])
        for k in range(4):
            p0, p8 = D + 3 + 2*k, D + 4 + 2*k
            a(f'v_cndmask_b32 v43, v{p0}, v{p8}, vcc')
            chunk(4 + k, [(p8, p8), (p8, 43), (p0, p0), (p0, p0)])
        a(f'{l2}:\ns_mov_b64 exec, -1')
        a.wait_all(vm=False, force=True)
        a('s_barrier')
        a(f'v_lshlrev_b32 v40, 4, v0\nv_add_u32 v40, {L_KC}, v40')
        for c in range(2):
            b = 44 + 24 * c
            a.lds(f'ds_read_b128 v[{b}:{b+3}], v40 offset:{c*4*KCS}')
            tk[c] = a.lds(f'ds_read_b64 v[{b+4}:{b+5}], v40 offset:{c*4*KCS+16}')
        for c in range(2):
            b = 44 + 24 * c
            a.wait(lg=tk[c])
            for k in range(4): a(f'v_alignbit_b32 v{b+8+k}, v{b+k+1}, v{b+k}, 16')
            a.lds(f'ds_write_b128 v40, v[{b+8}:{b+11}] offset:{(c*4+1)*KCS}')
            a(f'v_pk_mov_b32 {P(b+12)}, {P(b)}, {P(b+2)} op_sel:[1,0]\nv_pk_mov_b32 {P(b+14)}, {P(b+2)}, {P(b+4)} op_sel:[1,0]')
            a.lds(f'ds_write_b128 v40, v[{b+12}:{b+15}] offset:{(c*4+2)*KCS}')
            for k in range(4): a(f'v_alignbit_b32 v{b+16+k}, v{b+k+2}, v{b+k+1}, 16')
            a.lds(f'ds_write_b128 v40, v[{b+16}:{b+19}] offset:{(c*4+3)*KCS}')

    def conv(self):
        a = self.a
        P = lambda r: f'v[{r}:{r+1}]'
        BASE = 16
        XA = 32
        ST = 40
        for k in range(4):
            t_st = a.vmem(f'buffer_load_dwordx4 v[{ST+4*k}:{ST+4*k+3}], v{V_ST}, s[{R_WS}:{R_WS+3}], s{S_STIN} offen offset:{16*k} sc1')
        a.vmem(f'buffer_load_dwordx4 v[{XA}:{XA+3}], v{V_XIN}, s[{R_WS}:{R_WS+3}], s{S_XIN} offen sc1')
        t_x = a.vmem(f'buffer_load_dwordx4 v[{XA+4}:{XA+7}], v{V_XIN}, s[{R_WS}:{R_WS+3}], s{S_XIN} offen offset:16 sc1')
        RS, CC, U = 56, 64, 72
        a(f'v_mov_b32 v96, s{S_K2}\nv_mov_b32 v97, s{S_K2+1}')
        a.wait(vm=t_st)
        for i in range(8): a(f'v_pk_fma_f32 {P(ST+2*i)}, {P(ST+2*i)}, s[{S_K1}:{S_K1+1}], v[96:97]')
        for i in range(8): a(f'v_fma_f32 v{RS+i}, -v{ST+2*i}, v{ST+2*i}, v{ST+2*i+1}')
        for i in range(8): a(f'v_max_f32 v{RS+i}, v97, v{RS+i}')
        for i in range(8): a(f'v_rsq_f32 v{RS+i}, v{RS+i}')
        for i in range(8): a(f'v_mul_f32_e64 v{CC+i}, -v{ST+2*i}, v{RS+i}')
        a.wait(vm=t_x)
        for i in range(8):
            a(f'v_lshlrev_b32 v{BASE+2*i}, 16, v{XA+i}\nv_and_b32 v{BASE+2*i+1}, 0xffff0000, v{XA+i}')
        for c in range(2):
            for i in range(4):
                a(f'v_pk_fma_f32 {P(U+8*c+2*i)}, {P(BASE+8*c+2*i)}, {P(RS+2*i)}, {P(CC+2*i)}')
            for i in range(4):
                a(f'v_cvt_pk_bf16_f32 v{88+4*c+i}, v{U+8*c+2*i}, v{U+8*c+2*i+1}')
            a.lds(f'ds_write_b128 v{V_UW}, v[{88+4*c}:{91+4*c}] offset:{c*UIS}')
        for c in range(2):
            sel = 'op_sel_hi:[1,0,1]' if c == 0 else 'op_sel:[0,1,0]'
            for i in range(4):
                a(f'v_pk_fma_f32 {P(BASE+8*c+2*i)}, {P(U+8*c+2*i)}, s[{S_DK}:{S_DK+1}], {P(BASE+8*c+2*i)} {sel}')
        a.wait_all(vm=False)
        a('s_barrier')
        self.ts('conv_mfma', True)
        seq = []
        for ii in range(4):
            if ii == 0 or ii == 2:
                s = [(q, p) for p in range(7, -1, -1) for q in range(8 - p)]
            elif ii == 1:
                s = [(q, p) for q in range(8) for p in range(8 - q)]
            else:
                s = [(q, cb - q) for cb in range(8) for q in range(cb + 1)]
            seq += [(ii, q, p) for q, p in s]
        first = {}; last = {}
        for n, (ii, q, p) in enumerate(seq):
            for key in (('A', ii, q), ('B', ii, p)):
                first.setdefault(key, n); last[key] = n
        order = sorted(first, key=lambda k: first[k])
        pool = [32 + 4 * i for i in range(27)]
        reg = {}; tok = {}; nxt = [0]
        ACC = 224
        def issue(n, maxn):
            cnt = 0
            while nxt[0] < len(order) and pool and cnt < maxn:
                key = order[nxt[0]]
                if first[key] > n + 40: break
                if a.lg - a.lg_done > 12: break
                r = pool.pop(0); reg[key] = r
                kind, ii, x = key
                if kind == 'A':
                    off = 64 * (3 - ii) + 512 * (7 - x)
                    a.lds(f'ds_read_b64 v[{r}:{r+1}], v{V_CA} offset:{off}')
                    tok[key] = a.lds(f'ds_read_b64 v[{r+2}:{r+3}], v{V_CA} offset:{off+8}')
                    cnt += 2
                else:
                    tok[key] = a.lds(f'ds_read_b128 v[{r}:{r+3}], v{V_CB} offset:{64*(3-ii)+512*x}')
                    cnt += 1
                nxt[0] += 1
        issue(0, 12)
        started = set(); pend = []
        for n, (ii, q, p) in enumerate(seq):
            ka, kb = ('A', ii, q), ('B', ii, p)
            while ka not in tok or kb not in tok:
                a.wait(lg=a.lg - 8); issue(n, 3)
            a.wait(lg=max(tok[ka], tok[kb]))
            cb = q + p
            acc = f'a[{ACC+4*cb}:{ACC+4*cb+3}]'
            a(f'v_mfma_f32_16x16x32_bf16 {acc}, v[{reg[ka]}:{reg[ka]+3}], v[{reg[kb]}:{reg[kb]+3}], ' + (acc if cb in started else '0'))
            started.add(cb)
            for key in (ka, kb):
                if last[key] == n: pool.append(reg[key])
            if ii == 3 and p == 0: pend.append((n, cb))
            if pend and n - pend[0][0] >= 5:
                _, c2 = pend.pop(0)
                a.lds(f'ds_write_b128 v{V_PW}, a[{ACC+4*c2}:{ACC+4*c2+3}] offset:{256*c2}')
            else:
                issue(n, 1)
        for _, c2 in pend:
            a.lds(f'ds_write_b128 v{V_PW}, a[{ACC+4*c2}:{ACC+4*c2+3}] offset:{256*c2}')
        a.wait_all(vm=False)
        a('s_barrier')
        self.ts('conv_mfma_end', True)
        tk = {}
        for c in range(2):
            for v in range(2):
                for hh in range(2):
                    r = 32 + 16 * c + 8 * v + 4 * hh
                    tk[c, v] = a.lds(f'ds_read_b128 v[{r}:{r+3}], v{V_PR} offset:{(2*c+v)*PWS + hh*PH}')
        for c in range(2):
            for v in range(2):
                a.wait(lg=tk[c, v])
                for i in range(4):
                    a(f'v_pk_add_f32 {P(BASE+8*c+2*i)}, {P(BASE+8*c+2*i)}, {P(32+16*c+8*v+2*i)}')
            for i in range(4):
                a(f'v_cvt_pk_bf16_f32 v{64+4*c+i}, v{BASE+8*c+2*i}, v{BASE+8*c+2*i+1}')
            a.vmem(f'buffer_store_dwordx4 v[{64+4*c}:{67+4*c}], v{V_XOUT}, s[{R_WS}:{R_WS+3}], s{S_XOUT} offen offset:{64*c} sc1')

    def weights(self):
        a = self.a
        P = lambda r: f'v[{r}:{r+1}]'
        VA, VR = 16, 17
        a(f'''s_mul_i32 s{S_T4}, s{S_W}, {SLOT}
        v_add_u32 v{VR}, s{S_T4}, v{V_TR}
        v_lshrrev_b32 v18, 2, v{V_LANE}
        v_and_b32 v19, 3, v{V_LANE}
        v_mul_u32_u24 v{VA}, 3584, v18
        v_lshl_add_u32 v{VA}, v19, 4, v{VA}
        s_lshl_b32 s{S_T0}, s{S_NB}, 2
        s_add_u32 s{S_T0}, s{S_T0}, s{S_W}
        s_lshl_b32 s{S_T0}, s{S_T0}, 6''')
        def batch(srd, steps, dests):
            for i in range(28):
                a(f's_add_u32 m0, s{S_T4}, {1024*i}')
                a.vmem(f'buffer_load_dwordx4 v{VA}, s[{srd}:{srd+3}], s{S_T0} offen lds')
                a(steps(i))
            base = a.vm - 28
            for i in range(28):
                if i % 4 == 0: a.wait(vm=base + min(i + 4, 28))
                k, r = dests(i)
                a.lds(f'ds_read_b64_tr_b16 {k}[{r}:{r+1}], v{VR} offset:{1024*i}')
                a.lds(f'ds_read_b64_tr_b16 {k}[{r+2}:{r+3}], v{VR} offset:{1024*i+512}')
            a.wait_all(vm=False)
        batch(R_W1, lambda i: f's_add_u32 s{S_T0}, s{S_T0}, {16*3584}', lambda i: ('v', V_W1 + 4 * i))
        a(f'''s_lshl_b32 s{S_T1}, s{S_W}, 1
        s_and_b32 s{S_T2}, s{S_T1}, 2
        v_xor_b32 v19, s{S_T2}, v19
        v_mul_u32_u24 v{VA}, 896, v18
        v_lshl_add_u32 v{VA}, v19, 4, v{VA}
        s_mul_i32 s{S_T0}, s{S_W}, {448*896}
        s_lshl_b32 s{S_T1}, s{S_CB}, 7
        s_add_u32 s{S_T0}, s{S_T0}, s{S_T1}
        s_lshr_b32 s{S_T1}, s{S_W}, 1
        s_lshl_b32 s{S_T1}, s{S_T1}, 6
        s_add_u32 s{S_T0}, s{S_T0}, s{S_T1}''')
        for b in range(2):
            batch(R_W2, lambda i: (f's_xor_b32 s{S_T0}, s{S_T0}, 64' + ('' if i % 2 == 0 else f'\ns_add_u32 s{S_T0}, s{S_T0}, {16*896}')),
                  lambda i: ('a', 112 * b + 4 * i))
        a(f's_mov_b32 s{S_T7}, 0x3f803f80\nv_mov_b32 v20, 0\nv_mov_b32 v21, 0')
        for r in range(112): a(f'v_dot2c_f32_bf16 v{20+(r&1)}, s{S_T7}, v{V_W1+r}')
        a(f'''v_add_f32 v20, v20, v21
        v_mov_b32 v21, v20
        v_permlane32_swap_b32 v20, v21
        v_add_f32 v20, v20, v21
        v_mul_f32 v20, {fx(-1/448)}, v20''')
        for r in range(112):
            t = 22 + 2 * (r % 4)
            a(f'''v_lshlrev_b32 v{t}, 16, v{V_W1+r}
            v_and_b32 v{t+1}, 0xffff0000, v{V_W1+r}
            v_pk_add_f32 {P(t)}, {P(t)}, {P(20)} op_sel_hi:[1,0]
            v_cvt_pk_bf16_f32 v{V_W1+r}, v{t}, v{t+1}''')

    def hflag(self, half):
        a = self.a
        l1 = self.lab(); l2 = self.lab()
        a(f'''s_lshl_b32 s{S_T0}, s{S_NB}, 2
        s_add_u32 s{S_T0}, s{S_T0}, s{S_W}
        s_lshl_b32 s{S_T0}, s{S_T0}, 2
        s_add_u32 s{S_T0}, s{S_T0}, s{S_HF}
        v_mov_b32 v{V_T0}, s{S_TAG}
        s_cmp_eq_u32 s{S_LOCAL}, 1
        s_cbranch_scc1 {l1}
        buffer_wbl2 sc1
        s_waitcnt vmcnt(0)
        buffer_store_dword v{V_T0}, off, s[{R_WS}:{R_WS+3}], s{S_T0} offset:{256*half} sc1
        s_branch {l2}
        {l1}:''')
        a.vmem(f'buffer_store_dword v{V_T0}, off, s[{R_WS}:{R_WS+3}], s{S_T0} offset:{256*half}')
        a(f'{l2}:')
    def hwait(self, half):
        a = self.a
        lp = self.lab(); dn = self.lab(); sk = self.lab()
        a(f'''s_mul_i32 s{S_T0}, s{S_W}, 56
        s_add_u32 s{S_T0}, s{S_T0}, s{S_HF}
        v_min_u32 v{V_T1}, 13, v{V_LANE}
        v_lshlrev_b32 v{V_T1}, 2, v{V_T1}
        {lp}:
        buffer_load_dword v{V_T2}, v{V_T1}, s[{R_WS}:{R_WS+3}], s{S_T0} offen offset:{256*half} sc1
        s_waitcnt vmcnt(0)
        v_cmp_ne_u32 vcc, s{S_TAG}, v{V_T2}''')
        self.spin_tail(lp, dn)
        a(f'''s_cmp_eq_u32 s{S_LOCAL}, 1
        s_cbranch_scc1 {sk}
        buffer_inv sc1
        s_waitcnt vmcnt(0)
        {sk}:''')
        a.vm_done = a.vm

    def gemm1(self):
        a = self.a
        tl = [S_T4, S_T5, S_T6, S_T7]
        a(f'''s_mov_b32 s{S_T4}, s{S_TE}
        s_xor_b32 s{S_T5}, s{S_TE}, 1
        s_mov_b32 s{S_T6}, s{S_TL}
        s_xor_b32 s{S_T7}, s{S_TL}, 1
        s_mul_i32 s{S_T3}, s{S_W}, 7168''')
        tdma = []
        for s in range(4):
            a(f'''s_mul_i32 s{S_T0}, s{tl[s]}, {SLOT}
            s_add_u32 s{S_T0}, s{S_T0}, s{S_XOUT}
            s_add_u32 s{S_T0}, s{S_T0}, s{S_T3}
            s_add_u32 m0, s{S_T3}, {s*SLOT}''')
            for i in range(7):
                if i == 4:
                    a(f's_add_u32 s{S_T0}, s{S_T0}, 4096\ns_add_u32 m0, s{S_T3}, {s*SLOT+4096}')
                t = a.vmem(f'buffer_load_dwordx4 v{V_L16}, s[{R_WS}:{R_WS+3}], s{S_T0} offen offset:{1024*(i%4)} sc1 lds')
            tdma.append(t)
        a(f'''s_lshl_b32 s{S_T0}, s{S_NB}, 2
        s_add_u32 s{S_T0}, s{S_T0}, s{S_W}
        s_lshl_b32 s{S_T0}, s{S_T0}, 11
        s_add_u32 s{S_T0}, s{S_T0}, s{S_HB}''')
        for s in range(4):
            a(f's_mul_i32 s{tl[s]}, s{tl[s]}, 114688\ns_add_u32 s{tl[s]}, s{tl[s]}, s{S_T0}')
        a(f'v_add_u32 v{V_T3}, {2*SLOT}, v{V_TR}')
        ACC = [16, 32]; FR = 48; NF = 7; PK = 80
        tok = {}
        def rd(f):
            s, k = divmod(f, 28)
            r = FR + 4 * (f % NF)
            va = V_TR if s < 2 else V_T3
            off = (s & 1) * SLOT + 1024 * k
            a.lds(f'ds_read_b64_tr_b16 v[{r}:{r+1}], v{va} offset:{off}')
            tok[f] = a.lds(f'ds_read_b64_tr_b16 v[{r+2}:{r+3}], v{va} offset:{off+512}')
        def epi_ops(s):
            c = ACC[s & 1]; ops = []
            for hh in range(2):
                for i in range(4):
                    ops.append(('v', f'v_cvt_pk_bf16_f32 v{PK+4*hh+i}, v{c+8*hh+2*i}, v{c+8*hh+2*i+1}'))
                for i in range(4):
                    ops.append(('v', f'v_pk_max_i16 v{PK+4*hh+i}, v{PK+4*hh+i}, 0'))
                ops.append(('m', f'buffer_store_dwordx4 v[{PK+4*hh}:{PK+4*hh+3}], v{V_L16}, s[{R_WS}:{R_WS+3}], s{tl[s]} offen offset:{1024*hh}'))
            return ops
        PD = NF - 1
        a.wait(vm=tdma[0]); a('s_barrier')
        self.ts('g1_start', True)
        for f in range(PD): rd(f)
        ops = []; tst = {}
        for f in range(112):
            s, k = divmod(f, 28)
            if k == 0 and s > 0: ops = epi_ops(s - 1)
            a.wait(lg=tok[f])
            c = ACC[s & 1]; r = FR + 4 * (f % NF)
            a(f'v_mfma_f32_32x32x16_bf16 v[{c}:{c+15}], v[{V_W1+4*k}:{V_W1+4*k+3}], v[{r}:{r+3}], ' + ('0' if k == 0 else f'v[{c}:{c+15}]'))
            if k == 28 - PD and s < 3:
                a.wait(vm=tdma[s + 1])
                a('s_barrier')
            if s == 3 and k == 8:
                a.wait(vm=tst[1]); self.hflag(0)
            if f + PD < 112: rd(f + PD)
            if k >= 3 and ops:
                kind, t = ops.pop(0)
                if kind == 'v': a(t)
                else: tst[s - 1] = a.vmem(t)
        for kind, t in epi_ops(3):
            if kind == 'v': a(t)
            else: tst[3] = a.vmem(t)
        a.wait_all()
        self.hflag(1)
        a('s_barrier')

    def gemm2(self):
        a = self.a
        P = lambda r: f'v[{r}:{r+1}]'
        ACC = 16
        ring = [('v', 80 + 4 * i) for i in range(10)] + [('a', 224 + 4 * i) for i in range(8)]
        NH = len(ring)
        SF = 120
        SA = 128
        RES = 132
        self.hwait(0)
        self.hwait(1)
        self.ts('g2_start', True)
        a(f'''s_mul_i32 s{S_T3}, s{S_W}, {SLOT}
        s_add_u32 s{S_T3}, s{S_T3}, s{S_HB}
        s_mul_i32 s{S_T4}, s{S_TE}, 114688
        s_add_u32 s{S_T4}, s{S_T4}, s{S_T3}
        s_mul_i32 s{S_T5}, s{S_TL}, 114688
        s_add_u32 s{S_T5}, s{S_T5}, s{S_T3}''')
        tok = {}
        def ld(f):
            tt, k = divmod(f, 28)
            so = S_T4 + tt
            kind, r = ring[f % NH]
            tok[f] = a.vmem(f'buffer_load_dwordx4 {kind}[{r}:{r+3}], v{V_L16}, s[{R_WS}:{R_WS+3}], s{so} offen offset:{1024*(k%4)} sc1')
            if k % 4 == 3: a(f's_add_u32 s{so}, s{so}, 4096')
        for f in range(NH - 1): ld(f)
        a(f'''s_mul_i32 s{S_T0}, s{S_W}, 7168
        v_add_u32 v{V_T0}, s{S_T0}, v{V_TR}
        v_add_u32 v{V_T1}, {2*SLOT}, v{V_T0}
        s_lshl_b32 s{S_T0}, s{S_CB}, 2
        s_add_u32 s{S_T0}, s{S_T0}, s{S_W}
        s_lshl_b32 s{S_T0}, s{S_T0}, 10
        v_add_u32 v{V_T2}, s{S_T0}, v{V_TR}
        s_mov_b32 s{S_T7}, 0x3f803f80''')
        for i in range(4): a(f'v_mov_b32 v{SA+i}, 0')
        a.lds(f'ds_read_b64_tr_b16 v[{RES}:{RES+1}], v{V_T2}')
        a.lds(f'ds_read_b64_tr_b16 v[{RES+2}:{RES+3}], v{V_T2} offset:512')
        a.lds(f'ds_read_b64_tr_b16 v[{RES+4}:{RES+5}], v{V_T2} offset:{2*SLOT}')
        a.lds(f'ds_read_b64_tr_b16 v[{RES+6}:{RES+7}], v{V_T2} offset:{2*SLOT+512}')
        sh = []
        stok = {}
        def srd(n):
            tt, k = divmod(n, 7); r = SF + 4 * (n & 1); va = V_T0 + tt
            a.lds(f'ds_read_b64_tr_b16 v[{r}:{r+1}], v{va} offset:{1024*k}')
            stok[n] = a.lds(f'ds_read_b64_tr_b16 v[{r+2}:{r+3}], v{va} offset:{1024*k+512}')
        srd(0); srd(1)
        for n in range(14):
            tt = n // 7; r = SF + 4 * (n & 1)
            for i in range(4):
                def op(n=n, i=i, tt=tt, r=r):
                    if i == 0: a.wait(lg=stok[n])
                    a(f'v_dot2c_f32_bf16 v{SA+2*tt}, s{S_T7}, v{r+i}\nv_dot2c_f32_bf16 v{SA+2*tt+1}, v{r+i}, v{r+i}')
                    if i == 3 and n + 2 < 14: srd(n + 2)
                sh.append(op)
        def fin():
            a(f'''v_permlane32_swap_b32 v{SA}, v{SA+1}
            v_permlane32_swap_b32 v{SA+2}, v{SA+3}
            v_and_b32 v{V_T0}, 31, v{V_LANE}
            v_lshlrev_b32 v{V_T0}, 5, v{V_T0}
            v_add_u32 v{V_T0}, {L_MISC}, v{V_T0}
            v_lshrrev_b32 v{V_T1}, 5, v{V_LANE}
            v_lshl_add_u32 v{V_T1}, v{V_T1}, 2, v{V_T0}
            s_lshl_b32 s{S_T0}, s{S_W}, 3
            v_add_u32 v{V_T1}, s{S_T0}, v{V_T1}
            v_add_f32 v{SA}, v{SA}, v{SA+1}
            v_add_f32 v{SA+2}, v{SA+2}, v{SA+3}''')
            a.lds(f'ds_write_b32 v{V_T1}, v{SA}')
            a.lds(f'ds_write_b32 v{V_T1}, v{SA+2} offset:1024')
        sh.append(fin)
        for f in range(56):
            tt, k = divmod(f, 28)
            a.wait(vm=tok[f])
            kind, r = ring[f % NH]
            for dt in range(2):
                c = ACC + 32 * tt + 16 * dt
                w = 8 * k + 4 * dt
                a(f'v_mfma_f32_32x32x16_bf16 v[{c}:{c+15}], a[{w}:{w+3}], {kind}[{r}:{r+3}], ' + ('0' if k == 0 else f'v[{c}:{c+15}]'))
                if dt == 0 and f + NH - 1 < 56: ld(f + NH - 1)
                if sh: sh.pop(0)()
        assert not sh
        self.ts('g2_mfma_end', True)
        for lam in range(1, 4):
            a(f'''s_xor_b32 s{S_T0}, s{S_W}, {lam}
            s_mul_i32 s{S_T0}, s{S_T0}, 6144
            s_add_u32 s{S_T0}, s{S_T0}, {SLOT + (lam-1)*2048}
            v_add_u32 v{80+lam}, s{S_T0}, v{V_L16}''')
        a(f'''s_mul_i32 s{S_T0}, s{S_W}, 6144
        s_add_u32 s{S_T0}, s{S_T0}, {SLOT}
        v_add_u32 v80, s{S_T0}, v{V_L16}''')
        for tt in range(2):
            for lam in range(1, 4):
                for q in range(2):
                    c = ACC + 32 * tt + 8 * lam + 4 * q
                    a.lds(f'ds_write_b128 v{80+lam}, v[{c}:{c+3}] offset:{2*SLOT*tt + 1024*q}')
        a.wait_all(vm=False)
        a('s_barrier')
        RS = 84; OUTP = 88
        tk = {}
        for tt in range(2):
            a.lds(f'ds_read_b128 v[{96+8*tt}:{99+8*tt}], v{V_T0} offset:{1024*tt}')
            tk['s', tt] = a.lds(f'ds_read_b128 v[{100+8*tt}:{103+8*tt}], v{V_T0} offset:{1024*tt+16}')
        for tt in range(2):
            for n in range(6):
                c = ACC + 32 * tt + 8 + 4 * n
                tk[tt, n] = a.lds(f'ds_read_b128 v[{c}:{c+3}], v80 offset:{2*SLOT*tt + 1024*n}')
        a(f'v_mov_b32 v112, s{S_K2}\nv_mov_b32 v113, s{S_K2+1}')
        for tt in range(2):
            b = 96 + 8 * tt
            a.wait(lg=tk['s', tt])
            a(f'''v_pk_add_f32 {P(b)}, {P(b)}, {P(b+2)}
            v_pk_add_f32 {P(b+4)}, {P(b+4)}, {P(b+6)}
            v_pk_add_f32 {P(b)}, {P(b)}, {P(b+4)}
            v_pk_fma_f32 {P(b)}, {P(b)}, s[{S_K1}:{S_K1+1}], v[112:113]
            v_fma_f32 v{b+1}, -v{b}, v{b}, v{b+1}
            v_max_f32 v{b+1}, v113, v{b+1}
            v_rsq_f32 v{RS+2*tt}, v{b+1}''')
        for tt in range(2):
            c = ACC + 32 * tt
            for i in range(4):
                a(f'v_lshlrev_b32 v{96+8*tt+2*i}, 16, v{RES+4*tt+i}\nv_and_b32 v{97+8*tt+2*i}, 0xffff0000, v{RES+4*tt+i}')
            for n in range(6):
                a.wait(lg=tk[tt, n])
                for i in range(2):
                    d = c + 4 * (n & 1) + 2 * i
                    a(f'v_pk_add_f32 {P(d)}, {P(d)}, {P(c+8+4*n+2*i)}')
            for i in range(4):
                a(f'v_pk_fma_f32 {P(c+2*i)}, {P(c+2*i)}, {P(RS+2*tt)}, {P(96+8*tt+2*i)} op_sel_hi:[1,0,1]')
            for i in range(4):
                a(f'v_cvt_pk_bf16_f32 v{OUTP+4*tt+i}, v{c+2*i}, v{c+2*i+1}')
        self.OUTP = OUTP

    def out_mid(self):
        a = self.a
        OUTP = self.OUTP
        RP = 40
        a(f'''s_mul_i32 s{S_T0}, s{S_W}, {64*RP}
        v_and_b32 v16, 31, v{V_LANE}
        v_lshrrev_b32 v17, 5, v{V_LANE}
        v_mul_u32_u24 v18, {RP}, v16
        v_lshl_add_u32 v18, v17, 3, v18
        v_add_u32 v18, s{S_T0}, v18''')
        for tt in range(2):
            a.lds(f'ds_write_b64 v18, v[{OUTP+4*tt}:{OUTP+4*tt+1}] offset:{32*RP*tt}')
            a.lds(f'ds_write_b64 v18, v[{OUTP+4*tt+2}:{OUTP+4*tt+3}] offset:{32*RP*tt+16}')
        a(f'''v_lshrrev_b32 v19, 4, v{V_LANE}
        v_bfe_u32 v20, v{V_LANE}, 2, 2
        v_lshl_add_u32 v20, v19, 3, v20
        v_mul_u32_u24 v20, {RP}, v20
        v_and_b32 v21, 3, v{V_LANE}
        v_lshl_add_u32 v20, v21, 3, v20
        v_add_u32 v20, s{S_T0}, v20''')
        tk = {}
        for tt in range(2):
            a.lds(f'ds_read_b64_tr_b16 v[{24+4*tt}:{25+4*tt}], v20 offset:{32*RP*tt}')
            tk[tt] = a.lds(f'ds_read_b64_tr_b16 v[{26+4*tt}:{27+4*tt}], v20 offset:{32*RP*tt+4*RP}')
        for i in range(4): a(f'v_mov_b32 v{32+i}, 0')
        for tt in range(2):
            for i in range(4):
                a(f'v_dot2c_f32_bf16 v{32+2*tt}, s{S_T7}, v{OUTP+4*tt+i}\nv_dot2c_f32_bf16 v{33+2*tt}, v{OUTP+4*tt+i}, v{OUTP+4*tt+i}')
        a(f'''v_mul_u32_u24 v22, 7168, v19
        v_and_b32 v21, 15, v{V_LANE}
        v_lshl_add_u32 v22, v21, 4, v22
        s_lshl_b32 s{S_T0}, s{S_CB}, 2
        s_add_u32 s{S_T0}, s{S_T0}, s{S_W}
        s_lshl_b32 s{S_T0}, s{S_T0}, 8
        s_add_u32 s{S_T0}, s{S_T0}, {WS_X2}
        s_mul_i32 s{S_T1}, s{S_TE}, {SLOT}
        s_add_u32 s{S_T1}, s{S_T1}, s{S_T0}
        s_add_u32 s{S_T2}, s{S_T1}, {32*SLOT}
        v_permlane32_swap_b32 v32, v33
        v_permlane32_swap_b32 v34, v35
        s_lshl_b32 s{S_T0}, s{S_W}, 2
        v_add_u32 v23, {L_MISC+2048}, v{V_L16}
        v_add_u32 v36, s{S_T0}, v23
        v_add_f32 v32, v32, v33
        v_add_f32 v34, v34, v35''')
        a.lds('ds_write_b32 v36, v32')
        a.lds('ds_write_b32 v36, v34 offset:1024')
        for tt in range(2):
            a.wait(lg=tk[tt])
            a.vmem(f'buffer_store_dwordx4 v[{24+4*tt}:{27+4*tt}], v22, s[{R_WS}:{R_WS+3}], s{S_T1+tt} offen sc1')
        a.wait_all(vm=False)
        a('s_barrier')
        sk = self.lab()
        a(f'''s_cmp_ge_u32 s{S_W}, 2
        s_cbranch_scc1 {sk}
        s_lshl_b32 s{S_T0}, s{S_W}, 10
        v_add_u32 v23, s{S_T0}, v23
        ds_read_b128 v[40:43], v23
        s_lshl_b32 s{S_T0}, s{S_W}, 5
        s_add_u32 s{S_T0}, s{S_T0}, s{S_TE}
        s_lshl_b32 s{S_T0}, s{S_T0}, 8
        s_add_u32 s{S_T0}, s{S_T0}, {WS_ST2}
        v_lshlrev_b32 v16, 3, v16
        v_lshl_add_u32 v16, v17, 2, v16
        s_waitcnt lgkmcnt(0)
        v_add_f32 v40, v40, v41
        v_add_f32 v42, v42, v43
        v_add_f32 v40, v40, v42
        buffer_atomic_add_f32 v40, v16, s[{R_WS}:{R_WS+3}], s{S_T0} offen
        {sk}:''')

    def out_final(self):
        a = self.a
        OUTP = self.OUTP
        a(f'''v_and_b32 v16, 31, v{V_LANE}
        v_lshrrev_b32 v17, 5, v{V_LANE}
        v_mul_u32_u24 v18, 896, v16
        v_lshl_add_u32 v18, v17, 4, v18
        s_lshl_b32 s{S_T0}, s{S_CB}, 2
        s_add_u32 s{S_T0}, s{S_T0}, s{S_W}
        s_lshl_b32 s{S_T0}, s{S_T0}, 5
        s_mul_i32 s{S_T1}, s{S_TE}, {SLOT}
        s_add_u32 s{S_T0}, s{S_T0}, s{S_T1}
        v_add_u32 v18, s{S_T0}, v18
        v_add_u32 v19, {32*SLOT}, v18''')
        for tt in range(2):
            o = OUTP + 4 * tt
            a(f'v_permlane32_swap_b32 v{o}, v{o+2}\nv_permlane32_swap_b32 v{o+1}, v{o+3}')
            a.vmem(f'global_store_dwordx4 v{18+tt}, v[{o}:{o+3}], s[{S_OUT}:{S_OUT+1}]')

    def helper(self):
        a = self.a
        a('L_helper:')
        self.flag0()
        lp = self.lab()
        a(f'''v_lshlrev_b32 v16, 7, v0
        s_lshr_b32 s{S_T0}, s2, 3
        s_lshl_b32 s{S_T0}, s{S_T0}, 15''')
        for srd in (R_W1, R_W2):
            a(f's_mov_b32 s{S_T1}, s{S_T0}')
            for i in range(13):
                a(f'buffer_load_dword v{20+i}, v16, s[{srd}:{srd+3}], s{S_T1} offen\ns_add_u32 s{S_T1}, s{S_T1}, {4*32768}')
        a('s_waitcnt vmcnt(0)\ns_branch L_end')

    def dump_ts(self):
        a = self.a
        if not self.diag: return
        a.wait_all(force=True)
        self.ts('end')
        a(f's_memtime s[{S_TSP}:{S_TSP+1}]\ns_waitcnt lgkmcnt(0)\nv_writelane_b32 v{V_TS}, s{S_TSP}, 61')
        a(f'''s_lshl_b32 s{S_T0}, s2, 2
        s_add_u32 s{S_T0}, s{S_T0}, s{S_W}
        s_lshl_b32 s{S_T0}, s{S_T0}, 8
        s_add_u32 s{S_T0}, s{S_T0}, {WS_TS}
        v_writelane_b32 v{V_TS}, s{S_SPIN}, 62
        v_writelane_b32 v{V_TS}, s{S_LOCAL}, 63
        v_lshlrev_b32 v16, 2, v{V_LANE}
        buffer_store_dword v{V_TS}, v16, s[{R_WS}:{R_WS+3}], s{S_T0} offen''')

    def dump_lds(self, lo, n):
        a = self.a
        a.wait_all(force=True); a('s_barrier')
        a(f's_mul_i32 s{S_T0}, s2, 0x28000\ns_add_u32 s{S_T0}, s{S_T0}, {WS_DUMP}\nv_lshlrev_b32 v16, 4, v0\nv_add_u32 v17, {lo}, v16')
        for i in range((n + 4095) // 4096):
            a(f'''ds_read_b128 v[20:23], v17
            s_waitcnt lgkmcnt(0)
            buffer_store_dwordx4 v[20:23], v16, s[{R_WS}:{R_WS+3}], s{S_T0} offen
            s_waitcnt vmcnt(0)
            v_add_u32 v16, 4096, v16
            v_add_u32 v17, 4096, v17''')

    def build(self):
        a = self.a
        self.entry()
        a('s_cmp_lt_u32 s2, 32\ns_cbranch_scc1 L_helper')
        st = (a.vm, a.vm_done, a.lg, a.lg_done)
        self.kgen()
        self.ts('kgen')
        if self.stop == 'kgen':
            self.dump_lds(L_KC, 8 * KCS); a('s_branch L_end')
        self.wait_flag0()
        self.ts('flag0')
        a.wait_all(force=True)
        a('L_layer:')
        self.conv()
        self.gsignal()
        self.ts('conv_signalled', True)
        sk = self.lab()
        a(f's_cmp_lg_u32 s{S_LAYER}, 0\ns_cbranch_scc1 {sk}')
        self.weights()
        self.ts('weights')
        a(f'{sk}:')
        self.gwait()
        self.gemm1()
        self.gemm2()
        a(f's_cmp_lg_u32 s{S_LAYER}, 0\ns_cbranch_scc1 L_final')
        sv = (a.vm, a.vm_done, a.lg, a.lg_done)
        self.out_mid()
        self.gsignal()
        self.ts('mid_signalled')
        a(f'''s_mov_b32 s{S_LAYER}, 1
        s_mov_b32 s{S_XIN}, {WS_X2}
        s_mov_b32 s{S_STIN}, {WS_ST2}
        s_mov_b32 s{S_XOUT}, {WS_X3}
        s_mov_b32 s{S_HB}, {WS_H1}
        s_add_u32 s{S_HF}, s{S_HF}, 0x4000''')
        self.gwait()
        self.ts('mid_sync')
        a.wait_all(force=True)
        a('s_branch L_layer')
        a('L_final:')
        a.vm, a.vm_done, a.lg, a.lg_done = sv
        self.out_final()
        self.dump_ts()
        if self.pad is not None:
            a(f'''L_pad:
            s_memrealtime s[{S_TSP}:{S_TSP+1}]
            s_waitcnt lgkmcnt(0)
            s_sub_u32 s{S_T0}, s{S_TSP}, s{S_TS+1}
            s_cmp_lt_u32 s{S_T0}, 10000
            s_cbranch_scc1 L_pad''')
        a('s_endpgm')
        a.vm, a.vm_done, a.lg, a.lg_done = st
        self.helper()
        a('L_end:\ns_endpgm')
        body = a.text()
        head = open('interleave_layers__ssm_conv_s4__dense_activation_relu__prompt.s.ref').read().split('; Override launch')[0]
        src = head + f'; @launch grid=(256,1,1) block=(256,1,1) lds={LDS_BYTES}\n'
        src += f'''.amdgcn_target "amdgcn-amd-amdhsa--gfx950"
.text
.globl {KNAME}
.p2align 8
.type {KNAME},@function
{KNAME}:
{body}
.section .rodata,"a"
.p2align 6
.amdhsa_kernel {KNAME}
  .amdhsa_next_free_vgpr 512
  .amdhsa_next_free_sgpr 102
  .amdhsa_accum_offset 256
  .amdhsa_group_segment_fixed_size 0
  .amdhsa_kernarg_size 120
  .amdhsa_user_sgpr_count 2
  .amdhsa_user_sgpr_kernarg_segment_ptr 1
  .amdhsa_system_sgpr_workgroup_id_x 1
  .amdhsa_float_denorm_mode_32 3
.end_amdhsa_kernel
'''
        return src

if __name__ == '__main__':
    import argparse
    ap = argparse.ArgumentParser()
    ap.add_argument('-o', default='k.s')
    ap.add_argument('--diag', action='store_true')
    ap.add_argument('--stop', default=None)
    ap.add_argument('--pad', default=None)
    args = ap.parse_args()
    g = Gen(args.diag, args.stop, args.pad)
    open(args.o, 'w').write(g.build())
    import json; json.dump(g.tsn, open(args.o + '.ts', 'w'))
    print('wrote', args.o, 'auto nops', g.a.nops_added, 'lines', len(g.a.lines))
```

```python
import sys
sys.path.insert(0, 'work')
import gen
from gen import *
def variant(pre, post, padref, wb=False, npre=1):
    g = Gen(False, None, None)
    src = g.build()
    head, rest = src.split('; @launch')
    rest = rest.split('\n', 1)[1]
    L = ''
    if pre:
        for i in range(npre): L += '; @launch kernel=pre_kernel grid=(1,1,1) block=(64,1,1) lds=0\n'
    L += f'; @launch kernel={KNAME} grid=(256,1,1) block=(256,1,1) lds={LDS_BYTES}\n'
    if post: L += '; @launch kernel=post_kernel grid=(1,1,1) block=(64,1,1) lds=0\n'
    OFF = 0x3000
    body_start = f'{KNAME}:\n'
    if padref == 'M':
        rest = rest.replace(body_start, body_start + '    s_memrealtime s[96:97]\n', 1)
    final = 'L_final:\n'
    pad = ''
    if padref == 'M' and post:
        pad = f'''    s_cmp_lg_u32 s2, 32
    s_cbranch_scc1 L_nost
    v_mov_b32 v100, s96
    buffer_store_dword v100, off, s[60:63], 0 offset:{0x800} sc1
L_nost:
'''
    wbs = '''    s_waitcnt vmcnt(0)
    s_barrier
    buffer_wbl2 sc1
    s_waitcnt vmcnt(0)
''' if wb else ''
    if padref and not post:
        if padref == 'A':
            pad = f'''    buffer_load_dword v100, off, s[60:63], 0 offset:{0x800} sc1
    s_waitcnt vmcnt(0)
    v_readfirstlane_b32 s96, v100
'''
        pad += wbs + '''L_pad:
    s_memrealtime s[98:99]
    s_waitcnt lgkmcnt(0)
    s_sub_u32 s98, s98, s96
    s_cmp_lt_u32 s98, 10000
    s_cbranch_scc1 L_pad
'''
    i = rest.index('s_endpgm', rest.index(final))
    rest = rest[:i] + 's_nop 0\n' + pad + '    ' + rest[i:]
    extra = ''
    desc = ''
    def kd(n): return f'''.p2align 6
.amdhsa_kernel {n}
  .amdhsa_next_free_vgpr 8
  .amdhsa_next_free_sgpr 24
  .amdhsa_accum_offset 8
  .amdhsa_group_segment_fixed_size 0
  .amdhsa_kernarg_size 120
  .amdhsa_user_sgpr_count 2
  .amdhsa_user_sgpr_kernarg_segment_ptr 1
  .amdhsa_system_sgpr_workgroup_id_x 1
.end_amdhsa_kernel
'''
    if pre:
        extra += '''.globl pre_kernel
.p2align 8
.type pre_kernel,@function
pre_kernel:
    s_memrealtime s[10:11]
    s_load_dwordx2 s[4:5], s[0:1], 112
    s_cmp_ge_u32 s2, 1
    s_cbranch_scc1 L_pe
    s_waitcnt lgkmcnt(0)
    v_mov_b32 v1, 0
    v_mov_b32 v2, s10
    global_store_dword v1, v2, s[4:5] offset:2048 sc1
L_pe:
    s_endpgm
'''
        desc += kd('pre_kernel')
    if post:
        extra += '''.globl post_kernel
.p2align 8
.type post_kernel,@function
post_kernel:
    s_load_dwordx2 s[4:5], s[0:1], 112
    s_cmp_ge_u32 s2, 1
    s_cbranch_scc1 L_qe
    s_waitcnt lgkmcnt(0)
''' + ('''    v_mov_b32 v1, 0
    global_load_dword v2, v1, s[4:5] offset:2048 sc1
    s_waitcnt vmcnt(0)
    v_readfirstlane_b32 s12, v2
L_qp:
    s_memrealtime s[10:11]
    s_waitcnt lgkmcnt(0)
    s_sub_u32 s10, s10, s12
    s_cmp_lt_u32 s10, 10000
    s_cbranch_scc1 L_qp
''' if padref else '') + '''L_qe:
    s_endpgm
'''
        desc += kd('post_kernel')
    rest = rest.replace('.section .rodata,"a"', extra + '.section .rodata,"a"') + desc
    return head + L + rest
open('o1.s', 'w').write(variant(True, False, 'A'))
open('o2.s', 'w').write(variant(False, True, 'M'))
open('o3.s', 'w').write(variant(True, True, 'A'))
open('o4.s', 'w').write(variant(False, False, 'M', wb=True))
open('o5.s', 'w').write(variant(False, False, None))
open('o6.s', 'w').write(variant(True, False, None, npre=4))
```
